```python
import torch

def _softmax(x, axis=-1):
    return torch.softmax(x, dim=axis)
def _gelu(x):
    return torch.nn.functional.gelu(x, approximate="tanh")
def _silu(x):
    return torch.nn.functional.silu(x)
def _sigmoid(x):
    return torch.sigmoid(x)
def _layernorm(x, axis=-1, eps=1e-5):
    m = x.mean(dim=axis, keepdim=True)
    v = x.var(dim=axis, keepdim=True, unbiased=False)
    return (x - m) / torch.sqrt(v + eps)
def _scatter_add(tgt, idx, src, axis=0):
    return tgt.clone().index_add_(axis, idx, src)
def _segment_sum(src, seg, n):
    out = torch.zeros((n,) + src.shape[1:], dtype=src.dtype)
    return out.index_add_(0, seg, src)
def _pad(x, pw):
    flat = tuple(v for pair in reversed(pw) for v in pair)
    return torch.nn.functional.pad(x, flat)

kernel_name = 'gated_mix__mha_block__ssm_conv_s4d__prompt'

def setup_inputs():

    _w = (lambda a: (lambda t: t.to(torch.bfloat16) if t.is_floating_point() else t)(torch.as_tensor(a)))
    def _A_setup():
        B, S, D, H = 1, 2048, 448, 16
        return {
            "x": _w((lambda *s: torch.randn(*s, dtype=torch.bfloat16) * 0.05)(B, S, D)),
            "wqkv": _w((lambda *s: torch.randn(*s, dtype=torch.bfloat16) * 0.8)(D, 3 * D)),
            "wo": _w((lambda *s: torch.randn(*s, dtype=torch.bfloat16) * 0.05)(D, D)),
        }
    _A_in = _A_setup()

    def _B_setup():
        Bsz, L, D, N = 1, 2048, 448, 256
        return {
            "u": _w((lambda *s: torch.randn(*s, dtype=torch.bfloat16) * 0.05)(Bsz, L, D)),
            "log_A_real": _w((lambda *s: torch.randn(*s, dtype=torch.bfloat16) * 3.2)(D, N) * 0.5),
            "A_imag": _w((lambda *s: torch.randn(*s, dtype=torch.bfloat16) * 0.05)(D, N) * 3.14),
            "C_real": _w((lambda *s: torch.randn(*s, dtype=torch.bfloat16) * 0.8)(D, N) / N ** 0.5),
            "C_imag": _w((lambda *s: torch.randn(*s, dtype=torch.bfloat16) * 0.8)(D, N) / N ** 0.5),
            "log_dt": _w((lambda *s: torch.randn(*s, dtype=torch.bfloat16) * 0.05)(D) * 0.5 - 4.0),
            "D_skip": _w((lambda *s: torch.randn(*s, dtype=torch.bfloat16) * 0.1)(D)),
        }
    _B_in = _B_setup()

    return {
        "A_x": _A_in["x"],
        "A_wqkv": _A_in["wqkv"],
        "A_wo": _A_in["wo"],
        "B_u": _B_in["u"],
        "B_log_A_real": _B_in["log_A_real"],
        "B_A_imag": _B_in["A_imag"],
        "B_C_real": _B_in["C_real"],
        "B_C_imag": _B_in["C_imag"],
        "B_log_dt": _B_in["log_dt"],
        "B_D_skip": _B_in["D_skip"],
        "gate_w": _w((lambda *s: torch.randn(*s, dtype=torch.bfloat16) * 0.05)(448) * 16.0),
    }

def reference(A_x, A_wqkv, A_wo, B_u, B_log_A_real, B_A_imag, B_C_real, B_C_imag, B_log_dt, B_D_skip, gate_w):
    def _A_ref(x, wqkv, wo):
        B, S, D = x.shape
        H = 16
        Dh = D // H
        qkv = (lambda x, *d: x.permute(*d))((x @ wqkv).reshape(B, S, 3, H, Dh), 2, 0, 3, 1, 4)
        q, k, v = qkv[0], qkv[1], qkv[2]
        scores = torch.einsum("bhqd,bhkd->bhqk", q, k) * (Dh ** -0.5)
        p = _softmax(scores, axis=-1)
        o = torch.einsum("bhqk,bhkd->bhqd", p, v)
        return (lambda x, *d: x.permute(*d))(o, 0, 2, 1, 3).reshape(B, S, D) @ wo

    def _B_ref(u, log_A_real, A_imag, C_real, C_imag, log_dt, D_skip):
        L = u.shape[1]
        dt = torch.exp(log_dt)
        A = -torch.exp(log_A_real) + 1j * A_imag
        C = (C_real + 1j * C_imag) * dt[:, None]
        pos = (lambda x, dt: x.to(dt))(torch.arange(L), log_dt.dtype)
        P = torch.exp((A * dt[:, None])[:, :, None] * pos[None, None, :])
        K = 2.0 * torch.einsum("dn,dnl->dl", C, P).real
        L2 = 2 * L
        u_t = (lambda x, *d: x.permute(*d))(u, 0, 2, 1)
        Kf = (lambda x, *a, **k: torch.fft.rfft(x.float(), *a, **k))(K, L2)
        Uf = (lambda x, *a, **k: torch.fft.rfft(x.float(), *a, **k))(u_t, L2)
        y = (lambda x, *a, **k: torch.fft.irfft(x, *a, **k).to(torch.bfloat16))(Uf * Kf[None, :, :], L2)[:, :, :L]
        y = (lambda x, *d: x.permute(*d))(y, 0, 2, 1)
        return y + u * D_skip[None, None, :]

    x = A_x
    g = _sigmoid((x * gate_w).sum(-1, keepdims=True))
    a = _A_ref(x, A_wqkv, A_wo)
    b = _B_ref(x, B_log_A_real, B_A_imag, B_C_real, B_C_imag, B_log_dt, B_D_skip)
    return g * a + (1 - g) * b
```

```python
import re

class Asm:
    def __init__(self):
        self.lines = []
    def __call__(self, s):
        for ln in s.split("\n"):
            ln = ln.strip()
            if ln:
                self.lines.append(ln if ln.endswith(":") or ln.startswith(".") or ln.startswith(";") else "    " + ln)
    def text(self):
        return "\n".join(self.lines) + "\n"

def vr(a, n=1):
    return f"v{a}" if n == 1 else f"v[{a}:{a+n-1}]"
def sr(a, n=1):
    return f"s{a}" if n == 1 else f"s[{a}:{a+n-1}]"

_reg = re.compile(r"^(-|abs\()?([vsa])(\d+|\[(\d+):(\d+)\])\)?$")
def regs(tok):
    tok = tok.strip()
    if tok in ("vcc", "exec", "m0", "scc"):
        return {tok}
    if tok in ("vcc_lo", "vcc_hi"): return {"vcc"}
    if tok in ("exec_lo", "exec_hi"): return {"exec"}
    m = _reg.match(tok)
    if not m:
        return set()
    k = m.group(2)
    if m.group(4) is not None:
        return {f"{k}{i}" for i in range(int(m.group(4)), int(m.group(5)) + 1)}
    return {f"{k}{int(m.group(3))}"}

TRANS = ("v_exp_f32", "v_log_f32", "v_rcp_f32", "v_rsq_f32", "v_sqrt_f32", "v_sin_f32", "v_cos_f32")

def parse(line):
    line = line.split(";")[0].strip()
    if not line or line.endswith(":") or line.startswith("."):
        return None
    parts = line.split(None, 1)
    mn = parts[0]
    ops = []
    if len(parts) > 1:
        depth = 0; cur = ""
        for ch in parts[1]:
            if ch == "[": depth += 1
            if ch == "]": depth -= 1
            if ch == "," and depth == 0:
                ops.append(cur.strip()); cur = ""
            else:
                cur += ch
        ops.append(cur.strip())
        last = ops[-1].split()
        ops[-1] = last[0] if last else ""
        mods = last[1:]
    else:
        mods = []
    I = dict(mn=mn, ops=ops, mods=mods, w=set(), r=set(), kind="other", line=line)
    base = re.sub(r"_(e32|e64|dpp|sdwa)$", "", mn)
    I["base"] = base
    R = [regs(o) for o in ops]
    if base.startswith("v_mfma"):
        I["kind"] = "mfma"; I["w"] = R[0]; I["A"] = R[1]; I["B"] = R[2]; I["C"] = R[3]; I["r"] = R[1] | R[2] | R[3]
        I["passes"] = 8 if "32x32x16" in base else 4
    elif base.startswith("v_cmp"):
        I["kind"] = "valu"; I["w"] = R[0]; I["r"] = set().union(*R[1:])
        if base.startswith("v_cmpx"): I["w"] = I["w"] | {"exec"}
    elif base.startswith("v_permlane") and "swap" in base:
        I["kind"] = "valu"; I["w"] = R[0] | R[1]; I["r"] = R[0] | R[1]
    elif base in ("v_readfirstlane_b32", "v_readlane_b32"):
        I["kind"] = "valu"; I["w"] = R[0]; I["r"] = set().union(*R[1:])
    elif base in ("v_add_co_u32", "v_sub_co_u32", "v_addc_co_u32"):
        I["kind"] = "valu"; I["w"] = R[0] | R[1]; I["r"] = set().union(*R[2:])
    elif base.startswith("v_"):
        I["kind"] = "valu"
        if base != "v_nop":
            I["w"] = R[0]; I["r"] = set().union(*R[1:]) if len(R) > 1 else set()
            if base in ("v_fmac_f32", "v_pk_fmac_f16") or mn.endswith("_dpp") or mn.endswith("_sdwa"): I["r"] |= R[0]
    elif base.startswith("ds_read") or base.startswith("ds_bpermute") or base.startswith("ds_swizzle"):
        I["kind"] = "ds"; I["w"] = R[0]; I["r"] = set().union(*R[1:])
        if "d16" in base: I["r"] |= R[0]
    elif base.startswith("ds_"):
        I["kind"] = "ds"; I["r"] = set().union(*R)
    elif base.startswith("buffer_load") or base.startswith("global_load"):
        I["kind"] = "vmem"
        if "lds" in mods or "_lds_" in base:
            I["r"] = set().union(*R) | {"m0"}; I["dma"] = True
        else:
            I["w"] = R[0]; I["r"] = set().union(*R[1:])
    elif base.startswith("buffer_store") or base.startswith("global_store") or base.startswith("buffer_atomic") or base.startswith("global_atomic"):
        I["kind"] = "vmem"; I["r"] = set().union(*R)
        if "x4" in base or "x3" in base:
            I["wide"] = R[0] if base.startswith("buffer") else R[1]
        if "atomic" in base and "sc0" in mods: I["w"] = R[0]
    elif base.startswith("s_"):
        I["kind"] = "salu"
        if base in ("s_nop",):
            I["nop"] = int(ops[0], 0) + 1
        elif base.startswith("s_cmp") or base.startswith("s_cbranch") or base in ("s_branch", "s_waitcnt", "s_barrier", "s_endpgm", "s_setprio", "s_sleep"):
            I["r"] = set().union(*R) if R else set()
        else:
            I["w"] = R[0]; I["r"] = set().union(*R[1:]) if len(R) > 1 else set()
            if "saveexec" in base: I["w"] = I["w"] | {"exec"}
    return I

def need(p, c):
    n = 0
    pk, ck = p["kind"], c["kind"]
    pw = p["w"]
    if pk == "valu":
        vw = {x for x in pw if x[0] in "va" and x != "vcc"}
        sw = pw - vw
        if ck == "mfma" and vw & c["r"]: n = max(n, 2)
        if ck == "valu":
            if p["base"] in TRANS and c["base"] not in TRANS and vw & c["r"]: n = max(n, 1)
            if c["base"].startswith("v_permlane") and vw & c["r"]: n = max(n, 2)
            if c["mn"].endswith("_dpp") and vw & c["r"]: n = max(n, 2)
            if c["base"] in ("v_readfirstlane_b32", "v_readlane_b32") and vw & c["r"]: n = max(n, 1)
            if (sw - {"exec"}) & c["r"]: n = max(n, 2)
            if "exec" in sw and (c["mn"].endswith("_dpp")): n = max(n, 5)
            if "exec" in sw and c["base"] in ("v_readfirstlane_b32", "v_readlane_b32"): n = max(n, 4)
            if (p["mn"].endswith("_sdwa") or any(m.startswith("op_sel") for m in p["mods"]) and not p["base"].startswith("v_pk")) and vw & (c["r"] | c["w"]): n = max(n, 1)
        if p["base"] in TRANS and ck in ("ds", "vmem") and vw & c["r"]: n = max(n, 1)
        if ck == "vmem" and sw & c["r"]: n = max(n, 5)
        if ck == "mfma" and "exec" in sw: n = max(n, 4)
    if pk == "mfma":
        ps = p["passes"]
        t_ab = {4: 8, 8: 12}[ps]
        if ck == "mfma":
            if pw & (c["A"] | c["B"]): n = max(n, t_ab)
            if pw & c["C"]:
                if not (pw == c["C"] and c["passes"] == ps): n = max(n, {4: 6, 8: 10}[ps])
            elif pw & c["w"]:
                n = max(n, t_ab)
        elif ck in ("valu", "ds", "vmem"):
            if pw & (c["r"] | c["w"]): n = max(n, t_ab)
            if p["C"] & c["w"]: n = max(n, {4: 3, 8: 7}[ps])
    if pk == "salu" and "m0" in pw and (c.get("dma") or "addtid" in c["base"]): n = max(n, 1)
    if pk == "vmem" and p.get("wide") and p["wide"] & c["w"]: n = max(n, 2)
    return n

def check_hazards(text, verbose=True):
    lines = text.split("\n")
    ins = []; labels = {}
    for ln in lines:
        s = ln.split(";")[0].strip()
        if s.endswith(":"):
            labels[s[:-1]] = len(ins); continue
        I = parse(ln)
        if I: ins.append(I)
    def succ(i):
        I = ins[i]
        if I["base"] == "s_endpgm": return []
        if I["base"] == "s_branch": return [labels[I["ops"][0]]]
        out = [i + 1] if i + 1 < len(ins) else []
        if I["base"].startswith("s_cbranch"): out.append(labels[I["ops"][0]])
        return out
    bad = []
    for i, p in enumerate(ins):
        if p["kind"] not in ("valu", "mfma", "salu", "vmem"): continue
        if not p["w"] and not p.get("wide") and p["kind"] != "mfma": continue
        seen = {}
        stack = [(j, 0) for j in succ(i)]
        while stack:
            j, d = stack.pop()
            if d >= 13 or seen.get(j, 99) <= d: continue
            seen[j] = d
            c = ins[j]
            n = need(p, c)
            if n > d:
                bad.append((p["line"], c["line"], n, d))
            for k in succ(j):
                stack.append((k, d + c.get("nop", 1)))
    bad = list(dict.fromkeys(bad))
    if verbose:
        for b in bad:
            print(f"HAZARD: need {b[2]} have {b[3]}:\n    {b[0]}\n    {b[1]}")
    return bad

def kd(name, vgpr, sgpr=96, extra=""):
    acc = (vgpr + 3) // 4 * 4
    return f""".p2align 6
.amdhsa_kernel {name}
  .amdhsa_next_free_vgpr {vgpr}
  .amdhsa_next_free_sgpr {sgpr}
  .amdhsa_accum_offset {acc}
  .amdhsa_group_segment_fixed_size 0
  .amdhsa_kernarg_size 112
  .amdhsa_user_sgpr_count 2
  .amdhsa_user_sgpr_kernarg_segment_ptr 1
  .amdhsa_system_sgpr_workgroup_id_x 1
{extra}.end_amdhsa_kernel
"""
```

```python
from asmlib import *
from layout import *

K1_LDS_P = 131072
K1_LDS_U = K1_LDS_P + 8192
K1_LDS = K1_LDS_U + 8192

def gen_k1(a):
    a(f"""
.p2align 8
k1_kernel:
s_cmp_ge_u32 s2, 256
s_cbranch_scc1 K1_end
s_load_dwordx2 s[4:5], s[0:1], 0
s_load_dwordx2 s[8:9], s[0:1], 8
s_load_dwordx2 s[12:13], s[0:1], 104
s_load_dwordx16 s[16:31], s[0:1], 32
v_lshrrev_b32 v1, 6, v0
v_and_b32 v0, 63, v0
v_readfirstlane_b32 s3, v1
s_mov_b32 s6, {2048*896}
s_mov_b32 s7, 0x20000
s_mov_b32 s10, {448*2688}
s_mov_b32 s11, 0x20000
s_mov_b32 s14, {WS_BYTES}
s_mov_b32 s15, 0x20000
s_and_b32 s32, s2, 7
s_bfe_u32 s33, s2, 0x20003
s_lshr_b32 s34, s2, 5
s_lshl2_add_u32 s35, s32, s33
s_cmp_eq_u32 s34, 7
s_cbranch_scc1 K1_gate
s_cmp_ge_u32 s3, 4
s_cbranch_scc1 K1_kgen
""")
    gemm(a)
    kgen(a)
    gate(a)
    a("K1_end:\ns_endpgm")

def gemm(a):
    XA0, XA1, WA = 1, 2, 3
    XR, WR = 4, 8
    XC, WC = 10, 14
    T0, T1, T2 = 16, 17, 18
    FA, FB = 20, 36
    ACC = 52
    a(f"""
v_lshrrev_b32 v{T0}, 3, v0
s_lshl_b32 s36, s35, 6
s_lshl_b32 s37, s3, 4
s_add_u32 s36, s36, s37
v_add_u32 v{T0}, s36, v{T0}
v_mul_u32_u24 v{T0}, 896, v{T0}
v_lshrrev_b32 v{T1}, 4, v0
v_xor_b32 v{T1}, v{T1}, v0
v_and_b32 v{T1}, 7, v{T1}
v_lshl_add_u32 v{XA0}, v{T1}, 4, v{T0}
v_xor_b32 v{T1}, 4, v{T1}
v_lshl_add_u32 v{XA1}, v{T1}, 4, v{T0}
v_add_u32 v{XA1}, {8*896 - 1024}, v{XA1}
v_lshrrev_b32 v{T0}, 2, v0
v_add_u32 v{T0}, s37, v{T0}
v_mul_u32_u24 v{T0}, 2688, v{T0}
v_and_b32 v{T1}, 3, v0
v_lshl_add_u32 v{WA}, v{T1}, 4, v{T0}
; jx = (j + 2a) % 7 ; first sigma = (jx + 1) % 7
s_lshl1_add_u32 s38, s33, s34
s_cmp_ge_u32 s38, 7
s_cselect_b32 s39, 7, 0
s_sub_u32 s38, s38, s39
s_add_u32 s39, s38, 1
s_cmp_eq_u32 s39, 7
s_cselect_b32 s39, 0, s39
s_mul_i32 s40, s34, 384
s_lshl_b32 s41, s3, 11
s_lshl_b32 s42, s3, 10
s_add_u32 s42, s42, 8192
s_mov_b32 s43, 0
s_mov_b32 s44, 0
s_mov_b32 s45, 0
; X frag read base: row = 32*(w&1) + l%32 ; (hf ^ ((row>>1)&7))*16
s_and_b32 s46, s3, 1
s_lshr_b32 s47, s3, 1
v_and_b32 v{T0}, 31, v0
v_lshrrev_b32 v{T1}, 5, v0
v_bfe_u32 v{T2}, v0, 1, 3
v_xor_b32 v{T2}, v{T2}, v{T1}
v_lshlrev_b32 v{T2}, 4, v{T2}
v_lshl_add_u32 v{T2}, v{T0}, 7, v{T2}
s_lshl_b32 s48, s46, 12
v_add_u32 v{XR}, s48, v{T2}
v_xor_b32 v{XR+1}, 32, v{XR}
v_xor_b32 v{XR+2}, 64, v{XR}
v_xor_b32 v{XR+3}, 96, v{XR}
; W tr read base: (8hf + i/4)*64 + ((l>>4)&1)*32 + (i%4)*8 + 8192 + ch*12288
v_bfe_u32 v{T0}, v0, 2, 2
v_lshl_add_u32 v{T0}, v{T1}, 3, v{T0}
v_lshlrev_b32 v{T0}, 6, v{T0}
v_and_b32 v{T2}, 16, v0
v_lshl_add_u32 v{T0}, v{T2}, 1, v{T0}
v_and_b32 v{T2}, 3, v0
v_lshl_add_u32 v{T0}, v{T2}, 3, v{T0}
s_mul_i32 s48, s47, 12288
s_add_u32 s48, s48, 8192
v_add_u32 v{WR}, s48, v{T0}
""")
    for i in range(48):
        a(f"v_mov_b32 v{ACC+i}, 0")
    a("""
s_waitcnt lgkmcnt(0)
K1_g_loop:
s_cmp_lt_u32 s43, 3
s_cbranch_scc1 K1_g_issue
s_waitcnt vmcnt(16)
s_cmp_lt_u32 s43, 8
s_cbranch_scc1 K1_g_bar
s_waitcnt vmcnt(8)
s_cmp_lt_u32 s43, 9
s_cbranch_scc1 K1_g_bar
s_waitcnt vmcnt(0)
K1_g_bar:
s_barrier
s_cmp_ge_u32 s43, 7
s_cbranch_scc1 K1_g_comp
K1_g_issue:
s_add_u32 m0, s44, s41
s_lshl_b32 s48, s39, 7
""")
    a(f"""
buffer_load_dwordx4 v{XA0}, s[4:7], s48 offen lds
buffer_load_dwordx4 v{XA1}, s[4:7], s48 offen offset:1024 lds
s_add_u32 m0, s44, s42
s_mul_i32 s48, s39, {64*2688}
s_add_u32 s48, s48, s40
""")
    for ct in range(6):
        a(f"buffer_load_dwordx4 v{WA}, s[8:11], s48 offen offset:{64*ct} lds")
        if ct < 5:
            a(f"s_add_u32 m0, m0, {4096-64}\ns_nop 0")
    a(f"""
s_add_u32 s39, s39, 1
s_cmp_eq_u32 s39, 7
s_cselect_b32 s39, 0, s39
s_add_u32 s44, s44, 32768
s_and_b32 s44, s44, 0x1ffff
s_cmp_lt_u32 s43, 3
s_cbranch_scc1 K1_g_next
K1_g_comp:
""")
    for u in range(4):
        a(f"v_add_u32 v{XC+u}, s45, v{XR+u}")
    a(f"v_add_u32 v{WC}, s45, v{WR}")
    def rd(u, F):
        a(f"ds_read_b128 {vr(F,4)}, v{XC+u}")
        for c in range(3):
            for t in range(2):
                a(f"ds_read_b64_tr_b16 {vr(F+4+4*c+2*t,2)}, v{WC} offset:{c*4096+u*1024+t*256}")
    def mm(F):
        for c in range(3):
            a(f"v_mfma_f32_32x32x16_bf16 {vr(ACC+16*c,16)}, {vr(F+4+4*c,4)}, {vr(F,4)}, {vr(ACC+16*c,16)}")
    rd(0, FA); rd(1, FB)
    a("s_waitcnt lgkmcnt(7)"); mm(FA); rd(2, FA)
    a("s_waitcnt lgkmcnt(7)"); mm(FB); rd(3, FB)
    a("s_waitcnt lgkmcnt(7)"); mm(FA)
    a("s_waitcnt lgkmcnt(0)"); mm(FB)
    a(f"""
s_add_u32 s45, s45, 32768
s_and_b32 s45, s45, 0x1ffff
K1_g_next:
s_add_u32 s43, s43, 1
s_cmp_lt_u32 s43, 10
s_cbranch_scc1 K1_g_loop
""")
    a(f"""
v_lshrrev_b32 v{T0}, 4, v0
v_bfe_u32 v{T1}, v0, 2, 2
v_lshl_add_u32 v{T1}, v{T0}, 4, v{T1}
v_lshlrev_b32 v{T1}, 7, v{T1}
v_bfe_u32 v{T2}, v0, 1, 1
s_lshl_b32 s48, s3, 1
v_or_b32 v{T2}, s48, v{T2}
v_bfe_u32 v{XC}, v0, 3, 1
v_xor_b32 v{T2}, v{T2}, v{XC}
v_lshl_add_u32 v{T1}, v{T2}, 4, v{T1}
v_and_b32 v{T2}, 1, v0
v_lshl_add_u32 v{T1}, v{T2}, 3, v{T1}
v_add_u32 v{XC}, 65536, v{T1}
v_xor_b32 v{XC+1}, 32, v{XC}
v_xor_b32 v{XC+2}, 64, v{XC}
v_xor_b32 v{XC+3}, 96, v{XC}
""")
    for t in range(4):
        a(f"ds_read_b64_tr_b16 {vr(FA+2*t,2)}, v{XC+t} offset:{512*t}")
    a(f"""
v_and_b32 v{T1}, 15, v0
v_lshlrev_b32 v{T1}, 12, v{T1}
v_lshl_add_u32 v{T1}, v{T0}, 5, v{T1}
s_lshl_b32 s48, s38, 2
s_add_u32 s48, s48, s3
s_lshl_b32 s48, s48, 16
s_lshl_b32 s49, s35, 7
s_add_u32 s48, s48, s49
s_add_u32 s48, s48, {XT_OFF}
v_lshrrev_b32 v{T0}, 5, v0
v_and_b32 v{T2}, 31, v0
v_lshlrev_b32 v{T2}, 3, v{T2}
v_mul_u32_u24 v{T0}, 288, v{T0}
v_xor_b32 v{XR}, v{T0}, v{T2}
v_xor_b32 v{XR+1}, 64, v{XR}
v_xor_b32 v{XR+2}, 128, v{XR}
v_xor_b32 v{XR+3}, 192, v{XR}
s_lshl1_add_u32 s50, s35, s46
s_mul_i32 s50, s50, {QKV_T}
s_lshl1_add_u32 s51, s34, s47
s_mul_i32 s51, s51, 3
s_lshl_b32 s52, s51, 11
s_add_u32 s50, s50, s52
s_waitcnt lgkmcnt(0)
buffer_store_dwordx4 {vr(FA,4)}, v{T1}, s[12:15], s48 offen
buffer_store_dwordx4 {vr(FA+4,4)}, v{T1}, s[12:15], s48 offen offset:16
""")
    for c in range(3):
        a(f"""
s_cmp_lt_u32 s51, {14-c}
s_cselect_b32 s52, {hex(f2u(QSCALE))}, 1.0
""")
        for i in range(8):
            r = ACC + 16*c + 2*i
            a(f"v_pk_mul_f32 {vr(r,2)}, {vr(r,2)}, s[52:53] op_sel_hi:[1,0]")
        for i in range(8):
            r = ACC + 16*c + 2*i
            a(f"v_cvt_pk_bf16_f32 v{ACC+16*c+i}, v{r}, v{r+1}")
        for q in range(4):
            a(f"buffer_store_dwordx2 {vr(ACC+16*c+2*q,2)}, v{XR+q}, s[12:15], s50 offen offset:{512*q}")
        if c < 2:
            a("s_add_u32 s50, s50, 2048")
    a("s_endpgm")

def kgen(a):
    JF = 2
    PA = 4
    GA = 6
    UA = 14
    T = 16
    PR = 24
    Z = 40
    TT = 48
    LO = 56
    HI = 72
    ACC = 88
    a(f"""
K1_kgen:
s_sub_u32 s3, s3, 4
s_lshr_b32 s36, s3, 2
s_and_b32 s37, s3, 3
s_lshl1_add_u32 s38, s2, s36
s_lshl_b32 s39, s2, 9
s_lshl_b32 s40, s3, 6
s_add_u32 s39, s39, s40
v_add_lshl_u32 v1, s39, v0, 1
s_lshl_b32 s39, s2, 2
s_waitcnt lgkmcnt(0)
global_load_ushort v{T}, v1, s[16:17]
global_load_ushort v{T+1}, v1, s[18:19]
global_load_ushort v{T+2}, v1, s[20:21]
global_load_ushort v{T+3}, v1, s[22:23]
s_load_dword s44, s[24:25], s39
s_load_dword s45, s[26:27], s39
s_lshl_b32 s41, s36, 12
s_add_u32 s41, s41, {K1_LDS_U}
s_lshl_b32 s40, s37, 6
v_add_u32 v5, s40, v0
v_lshl_add_u32 v1, v5, 4, s41
""")
    for i in range(16):
        a(f"v_mov_b32 v{ACC+i}, 0")
    a(f"""
ds_write_b128 v1, {vr(ACC,4)}
v_lshlrev_b32 v{T+4}, 3, v5
v_sub_u32 v{T+4}, 2047, v{T+4}
v_ffbh_u32 v{T+5}, v{T+4}
v_sub_u32 v{T+5}, 24, v{T+5}
v_max_i32 v{T+5}, 0, v{T+5}
v_cvt_f32_u32 v{T+4}, v{T+4}
v_add_u32 v{T+6}, 150, v{T+5}
v_lshlrev_b32 v{T+6}, 23, v{T+6}
v_lshlrev_b32 v{T+7}, 2, v{T+6}
v_lshl_add_u32 v{T+5}, v{T+5}, 9, s41
v_sub_u32 v{T+5}, v{T+5}, v{T+7}
""")
    for k in range(8):
        a(f"v_add_f32 v{GA+k}, v{T+4}, v{T+6}")
        if k < 7: a(f"v_add_f32 v{T+4}, -1.0, v{T+4}")
        a(f"v_lshl_add_u32 v{GA+k}, v{GA+k}, 2, v{T+5}")
    a(f"""
v_and_b32 v{JF}, 15, v0
v_lshrrev_b32 v{T+4}, 4, v0
v_lshl_add_u32 v{UA}, v{T+4}, 6, v{JF}
v_lshl_add_u32 v{UA}, v{UA}, 2, s41
v_cvt_f32_u32 v{JF}, v{JF}
s_lshl_b32 s42, s3, 10
s_add_u32 s42, s42, {K1_LDS_P}
v_lshl_add_u32 v{PA}, v{T+4}, 6, s42
v_lshl_add_u32 v1, v0, 4, s42
s_waitcnt lgkmcnt(0)
s_barrier
s_lshl_b32 s40, s36, 4
s_lshr_b32 s44, s44, s40
s_lshl_b32 s44, s44, 16
s_lshr_b32 s45, s45, s40
s_lshl_b32 s45, s45, 16
v_mov_b32 v{T+4}, {hex(f2u(LOG2E))}
v_mul_f32 v{T+5}, s44, v{T+4}
v_exp_f32 v{T+5}, v{T+5}
s_mov_b64 exec, 1
v_mul_f32 v{ACC}, s45, 0.5
v_mul_f32 v{ACC}, 0.5, v{ACC}
s_mov_b64 exec, -1
v_cvt_pk_bf16_f32 v{T+5}, v{T+5}, v{T+5}
v_lshlrev_b32 v{T+5}, 16, v{T+5}
s_waitcnt vmcnt(0)
v_lshlrev_b32 v{T}, 16, v{T}
v_lshlrev_b32 v{T+1}, 16, v{T+1}
v_lshlrev_b32 v{T+2}, 16, v{T+2}
v_lshlrev_b32 v{T+3}, 16, v{T+3}
v_mul_f32 v{T}, v{T}, v{T+4}
v_exp_f32 v{T}, v{T}
v_mul_f32 v{T+1}, v{T+1}, v{T+5}
v_cvt_pk_bf16_f32 v{T}, v{T}, v{T}
v_lshlrev_b32 v{T}, 16, v{T}
v_mul_f32 v{T}, v{T}, v{T+5}
v_mul_f32 v{T}, v{T}, -v{T+4}
v_mul_f32 v{T+1}, 0.15915494, v{T+1}
v_rndne_f32 v{T+6}, v{T+1}
v_sub_f32 v{T+1}, v{T+1}, v{T+6}
v_add_f32 v{T+5}, v{T+5}, v{T+5}
v_mul_f32 v{T+2}, v{T+2}, v{T+5}
v_mul_f32 v{T+3}, v{T+3}, v{T+5}
ds_write_b128 v1, {vr(T,4)}
v_mul_f32 v{T+4}, 0x45000000, v{T}
v_mul_f32 v{T+5}, 0x45000000, v{T+1}
v_fract_f32 v{T+5}, v{T+5}
v_exp_f32 v{T+4}, v{T+4}
v_cos_f32 v{T+6}, v{T+5}
v_sin_f32 v{T+7}, v{T+5}
v_mov_b32 v1, s41
v_mul_f32 v{T+6}, v{T+6}, v{T+2}
v_fma_f32 v{T+6}, -v{T+7}, v{T+3}, v{T+6}
v_mul_f32 v{T+6}, v{T+6}, v{T+4}
ds_add_f32 v1, v{T+6} offset:2560
s_mov_b32 s43, 0
K1_k_loop:
""")
    for q in range(4):
        a(f"ds_read_b128 {vr(PR+4*q,4)}, v{PA} offset:{16*q}")
    a(f"v_add_u32 v{PA}, 256, v{PA}")
    a("s_barrier")
    for q in range(4):
        a(f"s_waitcnt lgkmcnt({3-q})")
        a(f"v_pk_mul_f32 {vr(TT+2*q,2)}, {vr(PR+4*q,2)}, {vr(JF,2)} op_sel_hi:[1,0]")
    for q in range(4):
        a(f"v_exp_f32 v{TT+2*q}, v{TT+2*q}")
        a(f"v_cos_f32 v{Z+2*q}, v{TT+2*q+1}")
        a(f"v_sin_f32 v{Z+2*q+1}, v{TT+2*q+1}")
    for q in range(4):
        a(f"v_pk_mul_f32 {vr(Z+2*q,2)}, {vr(Z+2*q,2)}, {vr(TT+2*q,2)} op_sel_hi:[1,0]")
    def square():
        for q in range(4):
            a(f"v_pk_mul_f32 {vr(TT+2*q,2)}, {vr(Z+2*q,2)}, {vr(Z+2*q,2)} op_sel_hi:[1,0]")
        for q in range(4):
            a(f"v_pk_fma_f32 {vr(Z+2*q,2)}, {vr(Z+2*q,2)}, {vr(Z+2*q,2)}, {vr(TT+2*q,2)} op_sel:[1,1,0] op_sel_hi:[0,1,1] neg_lo:[1,0,0]")
    for e in range(4):
        for q in range(4):
            a(f"v_cvt_pk_bf16_f32 v{LO+4*e+q}, v{Z+2*q}, v{Z+2*q+1}")
        square()
    for e in range(4):
        for q in range(4):
            a(f"v_pk_mul_f32 {vr(TT+2*q,2)}, {vr(Z+2*q,2)}, {vr(PR+4*q+2,2)} op_sel_hi:[1,0] neg_hi:[1,0]")
        for q in range(4):
            a(f"v_pk_fma_f32 {vr(TT+2*q,2)}, {vr(Z+2*q,2)}, {vr(PR+4*q+2,2)}, {vr(TT+2*q,2)} op_sel:[1,1,0] op_sel_hi:[0,1,1] neg_lo:[1,0,0] neg_hi:[1,0,0]")
        for q in range(4):
            a(f"v_cvt_pk_bf16_f32 v{HI+4*e+q}, v{TT+2*q}, v{TT+2*q+1}")
        if e < 3:
            square()
        else:
            a("s_add_u32 s43, s43, 1\ns_cmp_lt_u32 s43, 4")
        a(f"v_mfma_f32_16x16x32_bf16 {vr(ACC+4*e,4)}, {vr(HI+4*e,4)}, {vr(LO+4*e,4)}, {vr(ACC+4*e,4)}")
    a(f"""
s_cbranch_scc1 K1_k_loop
s_barrier
s_barrier
s_nop 4
""")
    for r in range(4):
        a(f"ds_add_f32 v{UA}, v{ACC+r} offset:{64*r}")
    a("s_mov_b32 exec_lo, 0")
    for e in range(1, 4):
        for r in range(4):
            a(f"ds_add_f32 v{UA}, v{ACC+4*e+r} offset:{512*e+64*r}")
    a(f"""
s_mov_b32 exec_lo, -1
s_mul_i32 s40, s38, {KR_STRIDE}
s_add_u32 s40, s40, {KR_OFF}
v_lshlrev_b32 v1, 4, v5
s_waitcnt lgkmcnt(0)
s_barrier
""")
    for k in range(8):
        a(f"ds_read_b32 v{T+k}, v{GA+k}")
    for k in range(4):
        a(f"v_mov_b32 v{PR+k}, 0")
    a(f"""
v_cmp_gt_u32 vcc, 8, v5
s_and_saveexec_b64 s[46:47], vcc
s_cbranch_execz K1_k_notail
s_add_u32 s41, s40, 4096
buffer_store_dwordx4 {vr(PR,4)}, v1, s[12:15], s41 offen
K1_k_notail:
s_mov_b64 exec, -1
s_waitcnt lgkmcnt(0)
""")
    for k in range(4):
        a(f"v_cvt_pk_bf16_f32 v{T+k}, v{T+2*k}, v{T+2*k+1}")
    a(f"""
buffer_store_dwordx4 {vr(T,4)}, v1, s[12:15], s40 offen
s_endpgm
""")

def gate(a):
    X, W = 4, 32
    a(f"""
K1_gate:
s_cmp_ge_u32 s3, 8
s_cbranch_scc1 K1_end
s_lshl_b32 s36, s35, 6
s_lshl3_add_u32 s36, s3, s36
v_lshrrev_b32 v1, 3, v0
v_add_u32 v1, s36, v1
v_and_b32 v2, 7, v0
v_lshlrev_b32 v2, 4, v2
v_mul_u32_u24 v3, 896, v1
v_add_u32 v3, v3, v2
s_waitcnt lgkmcnt(0)
""")
    for i in range(7):
        a(f"global_load_dwordx4 {vr(X+4*i,4)}, v3, s[4:5] offset:{128*i}")
        a(f"global_load_dwordx4 {vr(W+4*i,4)}, v2, s[28:29] offset:{128*i}")
    a("v_mov_b32 v60, 0\ns_waitcnt vmcnt(0)")
    for i in range(28):
        a(f"v_dot2c_f32_bf16 v60, v{X+i}, v{W+i}")
    a(f"""
s_nop 2
v_add_f32_dpp v60, v60, v60 quad_perm:[1,0,3,2] row_mask:0xf bank_mask:0xf
s_nop 1
v_add_f32_dpp v60, v60, v60 quad_perm:[2,3,0,1] row_mask:0xf bank_mask:0xf
s_nop 1
v_add_f32_dpp v60, v60, v60 row_half_mirror row_mask:0xf bank_mask:0xf
v_mul_f32 v60, {hex(f2u(-LOG2E))}, v60
v_exp_f32 v60, v60
v_lshlrev_b32 v1, 2, v1
v_add_f32 v60, 1.0, v60
v_rcp_f32 v60, v60
s_mov_b32 s36, {G_OFF}
buffer_store_dword v60, v1, s[12:15], s36 offen
""")
```

```python
from asmlib import *
from layout import *

CV_BASE = 65536
CV_CH = 24320
CV_XP = 16640
CV_EX = 114688
K2_LDS = CV_EX + 16384
K2_VGPR = 112

def gen_k2(a):
    a(f"""
.p2align 8
k2_kernel:
s_cmp_ge_u32 s2, 256
s_cbranch_scc1 K2_end
s_load_dwordx2 s[4:5], s[0:1], 104
s_load_dwordx2 s[8:9], s[0:1], 104
v_lshrrev_b32 v1, 6, v0
v_and_b32 v0, 63, v0
v_readfirstlane_b32 s3, v1
s_mov_b32 s6, {64*QKV_T}
s_mov_b32 s7, 0x20000
s_mov_b32 s10, {WS_BYTES}
s_mov_b32 s11, 0x20000
v_lshlrev_b32 v1, 4, v0
v_and_b32 v2, 31, v0
v_lshrrev_b32 v3, 5, v0
s_cmp_ge_u32 s3, 8
s_cbranch_scc1 K2_conv
""")
    attn(a)
    conv(a)
    a("K2_end:\ns_endpgm")

def attn(a):
    KA, VA = 4, 8
    T = 12
    Q = 16
    KF = 24
    VF = 32
    P = 40
    O = 48
    S = [64, 80]
    NM = 96
    a(f"""
s_and_b32 s12, s2, 7
s_bfe_u32 s13, s2, 0x10003
s_lshl1_add_u32 s12, s12, s13
s_mul_i32 s12, s12, 7
s_lshr_b32 s13, s2, 4
s_and_b32 s14, s3, 3
s_lshl2_add_u32 s13, s13, s14
s_lshr_b32 s15, s3, 2
s_lshr_b32 s16, s3, 1
s_mul_i32 s16, s16, {QKV_T}
s_and_b32 s18, s3, 1
s_mul_i32 s19, s18, 112
s_add_u32 s19, s19, s12
s_add_u32 s19, s19, 112
s_lshl_b32 s19, s19, 8
s_add_u32 s16, s16, s19
s_lshl_b32 s17, s3, 11
s_mov_b32 m0, s17
s_waitcnt lgkmcnt(0)
""")
    def dma(slot, setm0=True):
        if setm0:
            a(f"s_add_u32 m0, s17, {slot*16384}\ns_nop 0")
        a(f"""
buffer_load_dwordx4 v1, s[4:7], s16 offen lds
s_mov_b32 exec_hi, 0xffff
buffer_load_dwordx4 v1, s[4:7], s16 offen offset:1024 lds
s_mov_b32 exec_hi, -1
s_add_u32 s16, s16, {4*QKV_T}
""")
    dma(0, False)
    a(f"v_lshlrev_b32 v{T}, 3, v2")
    for u in range(2):
        for t in range(2):
            r = KA + 2*u + t
            a(f"""
v_lshl_add_u32 v{T+1}, v3, 1, {4*u+t}
v_add_u32 v{T+2}, s12, v{T+1}
v_and_b32 v{T+2}, 7, v{T+2}
v_lshlrev_b32 v{T+2}, 5, v{T+2}
v_xor_b32 v{T+2}, v{T+2}, v{T}
v_lshl_add_u32 v{r}, v{T+1}, 8, v{T+2}
""")
    a(f"""
s_mul_i32 s20, s13, {QKV_T}
s_lshl_b32 s21, s12, 8
s_add_u32 s20, s20, s21
""")
    for i in range(4):
        a(f"buffer_load_dwordx2 {vr(Q+2*i,2)}, v{KA+i}, s[4:7], s20 offen")
    dma(1)
    a(f"""
; pad rows: lane -> slot l/16, chunk l%16
v_lshrrev_b32 v{T}, 4, v0
v_and_b32 v{T+1}, 15, v0
v_lshlrev_b32 v{T}, 14, v{T}
v_lshl_add_u32 v{T}, v{T+1}, 4, v{T}
v_add_u32 v{T}, s17, v{T}
s_mul_i32 s18, s18, 0x3f80
v_mov_b32 v{KF}, s18
v_mov_b32 v{KF+1}, 0
v_mov_b32 v{KF+2}, s18
v_mov_b32 v{KF+3}, 0
ds_write_b128 v{T}, {vr(KF,4)} offset:1792
v_bfe_u32 v{T}, v0, 4, 1
v_and_b32 v{T+1}, 3, v0
v_lshl_add_u32 v{T}, v{T}, 2, v{T+1}
v_bfe_u32 v{T+1}, v0, 2, 2
v_lshl_add_u32 v{T+1}, v3, 2, v{T+1}
v_lshlrev_b32 v{T+1}, 3, v{T+1}
v_add_u32 v{T+2}, s12, v{T}
v_and_b32 v{T+2}, 7, v{T+2}
v_lshlrev_b32 v{T+2}, 5, v{T+2}
v_xor_b32 v{T+1}, v{T+1}, v{T+2}
v_lshl_add_u32 v{T}, v{T}, 8, v{T+1}
s_lshl_b32 s21, s15, 13
s_add_u32 s22, s21, 2048
v_add_u32 v{VA}, s22, v{T}
v_xor_b32 v{VA+1}, 64, v{VA}
v_xor_b32 v{VA+2}, 128, v{VA}
v_xor_b32 v{VA+3}, 192, v{VA}
""")
    for i in range(4):
        a(f"v_add_u32 v{KA+i}, s21, v{KA+i}")
    for i in range(16):
        a(f"v_mov_b32 v{O+i}, 0")
    for i in range(4):
        a(f"v_mov_b32 v{P+4+i}, 0\nv_mov_b32 v{VF+4+i}, 0")
    def toff(t):
        return ((t // 2) % 4) * 16384 + (t % 2) * 4096
    def rdK(t):
        for i in range(4):
            a(f"ds_read_b64 {vr(KF+2*i,2)}, v{KA+i} offset:{toff(t)}")
    def rdV(t, u):
        for i in range(2):
            a(f"ds_read_b64_tr_b16 {vr(VF+4*u+2*i,2)}, v{VA+2*u+i} offset:{toff(t)}")
    def qk(Sx, u, c0="0"):
        c = c0 if u == 0 else vr(Sx, 16)
        a(f"v_mfma_f32_32x32x16_bf16 {vr(Sx,16)}, {vr(KF+4*u,4)}, {vr(Q+4*u,4)}, {c}")
    def pv(u):
        a(f"v_mfma_f32_32x32x16_bf16 {vr(O,16)}, {vr(VF+4*u,4)}, {vr(P+4*u,4)}, {vr(O,16)}")
    a(f"""
s_waitcnt vmcnt(2) lgkmcnt(0)
s_barrier
""")
    dma(2)
    rdK(0)
    a(f"""
s_mov_b32 exec_lo, 0
v_mov_b32 v{Q+6}, 0
v_mov_b32 v{Q+7}, 0
s_mov_b32 exec_lo, -1
s_mov_b32 s23, 0
s_waitcnt lgkmcnt(0)
""")
    qk(S[0], 0); qk(S[0], 1)
    rdK(1); rdV(0, 0)
    a("s_nop 5")
    a(".p2align 3\nK2_a_loop:")
    for k in range(8):
        Sc, Sn = S[k % 2], S[(k + 1) % 2]
        def e(i): a(f"v_exp_f32 v{Sc+i}, v{Sc+i}")
        def c(i): a(f"v_cvt_pk_bf16_f32 v{P+i}, v{Sc+2*i}, v{Sc+2*i+1}")
        e(0); e(1); a("s_waitcnt lgkmcnt(6)"); pv(1); rdV(k, 1); e(2); e(3); c(0); c(1)
        e(4); e(5); a("s_waitcnt lgkmcnt(2)"); qk(Sn, 0); e(6); e(7); c(2); c(3)
        e(8); e(9); qk(Sn, 1); e(10); e(11); c(4); c(5)
        if k % 2 == 0:
            a("s_waitcnt vmcnt(2)\ns_barrier")
            dma((k // 2 + 3) % 4)
        rdK(k + 2)
        e(12); e(13); pv(0); rdV(k + 1, 0); e(14); e(15); c(6); c(7)
    a(f"""
s_add_u32 s23, s23, 1
s_cmp_lt_u32 s23, 4
s_cbranch_scc1 K2_a_loop
s_waitcnt lgkmcnt(0)
""")
    pv(1)
    a(f"""
s_lshl_b32 s21, s14, 12
v_add_u32 v{T}, s21, v1
s_cmp_eq_u32 s15, 0
s_cbranch_scc1 K2_a_fin
s_nop 7
""")
    for i in range(4):
        a(f"ds_write_b128 v{T}, {vr(O+4*i,4)} offset:{1024*i}")
    a(f"""
s_waitcnt lgkmcnt(0)
s_barrier
s_endpgm
K2_a_fin:
s_barrier
""")
    for i in range(4):
        a(f"ds_read_b128 {vr(S[0]+4*i,4)}, v{T} offset:{1024*i}")
    a(f"""
s_mul_i32 s24, s13, {O_T}
s_lshl_b32 s25, s12, 8
s_add_u32 s24, s24, s25
s_add_u32 s24, s24, {O_OFF}
v_lshlrev_b32 v{T+1}, 3, v0
s_waitcnt lgkmcnt(0)
""")
    for i in range(16):
        a(f"v_add_f32 v{O+i}, v{O+i}, v{S[0]+i}")
    a(f"""
s_mov_b32 s26, 0x30800000
s_mov_b32 s27, 0x4e800000
s_mov_b32 exec_lo, 0
v_cmp_nge_f32 vcc, v{O+12}, s26
v_cmp_nle_f32 s[28:29], v{O+12}, s27
s_mov_b32 exec_lo, -1
s_or_b64 vcc, vcc, s[28:29]
s_cbranch_vccnz K2_a_slow
K2_a_store:
v_mov_b32 v{T+2}, v{O+12}
v_mov_b32 v{T+3}, v{O+12}
s_nop 1
v_permlane32_swap_b32 v{T+2}, v{T+3}
s_nop 0
v_rcp_f32 v{T+2}, v{T+3}
s_nop 0
""")
    for i in range(8):
        a(f"v_pk_mul_f32 {vr(O+2*i,2)}, {vr(O+2*i,2)}, {vr(T+2,2)} op_sel_hi:[1,0]")
    for i in range(8):
        a(f"v_cvt_pk_bf16_f32 v{O+i}, v{O+2*i}, v{O+2*i+1}")
    for q in range(4):
        if q == 3: a("s_mov_b32 exec_hi, 0")
        a(f"buffer_store_dwordx2 {vr(O+2*q,2)}, v{T+1}, s[8:11], s24 offen offset:{512*q}")
    a("s_endpgm")
    a(f"""
K2_a_slow:
s_add_u32 s21, s21, 49152
s_add_u32 s30, s12, 112
s_lshl_b32 s30, s30, 8
s_mov_b32 s31, 0
""")
    for i in range(8):
        a(f"v_add_u32 v{KA+i}, s21, v{KA+i}")
    for i in range(16):
        a(f"v_mov_b32 v{O+i}, 0\nv_mov_b32 v{NM+i}, 0")
    a(f"""
v_mov_b32 v{T+2}, 0xff800000
K2_s_pass:
s_mov_b32 s23, 0
s_mov_b32 s16, s30
K2_s_loop:
s_mov_b32 m0, s21
s_add_u32 s19, s16, {112*256 - 2048}
buffer_load_dwordx4 v1, s[4:7], s16 offen lds
buffer_load_dwordx4 v1, s[4:7], s19 offen offset:2048 lds
s_mov_b32 exec_hi, 0xffff
buffer_load_dwordx4 v1, s[4:7], s16 offen offset:1024 lds
buffer_load_dwordx4 v1, s[4:7], s19 offen offset:3072 lds
s_mov_b32 exec_hi, -1
s_add_u32 s16, s16, {QKV_T}
s_waitcnt vmcnt(0)
""")
    rdK(0); rdV(0, 0); rdV(0, 1)
    a("s_waitcnt lgkmcnt(0)")
    qk(S[0], 0, vr(NM, 16)); qk(S[0], 1)
    a("s_nop 11\ns_cmp_eq_u32 s31, 0\ns_cbranch_scc0 K2_s_exp")
    for i in range(8):
        a(f"v_max3_f32 v{T+2}, v{T+2}, v{S[0]+2*i}, v{S[0]+2*i+1}")
    a("s_branch K2_s_next\nK2_s_exp:")
    for i in range(16):
        a(f"v_exp_f32 v{S[0]+i}, v{S[0]+i}")
    for i in range(8):
        a(f"v_cvt_pk_bf16_f32 v{P+i}, v{S[0]+2*i}, v{S[0]+2*i+1}")
    a("s_nop 1")
    pv(0); pv(1)
    a(f"""
K2_s_next:
s_add_u32 s23, s23, 1
s_cmp_lt_u32 s23, 64
s_cbranch_scc1 K2_s_loop
s_nop 12
s_cmp_eq_u32 s31, 1
s_cbranch_scc1 K2_a_store
s_mov_b32 s31, 1
v_mov_b32 v{T+3}, v{T+2}
s_nop 1
v_permlane32_swap_b32 v{T+2}, v{T+3}
s_nop 1
v_max_f32 v{T+2}, v{T+2}, v{T+3}
""")
    for i in range(16):
        a(f"v_sub_f32 v{NM+i}, 0, v{T+2}")
    a("s_branch K2_s_pass")

def conv(a):
    FA, GA, T = 4, 5, 6
    FR = 16
    A0, A1 = 48, 64
    a(f"""
K2_conv:
s_cmp_ge_u32 s2, 224
s_cbranch_scc1 K2_end
s_setprio 3
s_sub_u32 s3, s3, 8
s_lshr_b32 s12, s3, 1
s_and_b32 s13, s3, 1
s_lshl1_add_u32 s14, s2, s12
s_mul_i32 s15, s12, {CV_CH}
s_add_u32 s15, s15, {CV_BASE}
s_mul_i32 s16, s14, {KR_STRIDE}
s_lshl2_add_u32 s16, s13, s16
s_add_u32 s16, s16, {KR_OFF}
s_mul_i32 s17, s13, 8320
s_add_u32 s17, s17, s15
s_mov_b32 m0, s17
s_waitcnt lgkmcnt(0)
""")
    for q in range(2):
        for i in range(4):
            a(f"buffer_load_dwordx4 v1, s[8:11], s16 offen offset:{1024*i} lds")
        if q == 0:
            a("s_add_u32 m0, s17, 4160\ns_add_u32 s16, s16, 2")
    a(f"""
s_lshl_b32 s18, s13, 7
v_add_u32 v{T}, s18, v0
s_lshl_b32 s19, s14, 12
s_add_u32 s19, s19, {XT_OFF}
s_lshl_b32 s18, s13, 11
s_add_u32 s18, s18, s15
s_add_u32 m0, s18, {CV_XP + 31*80}
""")
    for i in range(3):
        a(f"""
v_mul_u32_u24 v{T+1}, 205, v{T}
v_lshrrev_b32 v{T+1}, 10, v{T+1}
v_sub_u32 v{T+1}, v{T}, v{T+1}
v_lshlrev_b32 v{T+1}, 4, v{T+1}
buffer_load_dwordx4 v{T+1}, s[8:11], s19 offen lds
""")
        if i < 2:
            a(f"v_add_u32 v{T}, 64, v{T}\ns_add_u32 m0, m0, 1024")
    for i in range(32):
        a(f"v_mov_b32 v{A0+i}, 0")
    a(f"""
v_add_u32 v{T}, s15, v1
ds_write_b128 v{T}, {vr(A0,4)} offset:{CV_XP}
ds_write_b128 v{T}, {vr(A0,4)} offset:{CV_XP+1024}
ds_write_b128 v{T}, {vr(A0,4)} offset:{CV_XP+2480-1024}
v_add_u32 v{T}, s17, v1
s_mov_b64 exec, 15
ds_write_b128 v{T}, {vr(A0,4)} offset:4096
ds_write_b128 v{T}, {vr(A0,4)} offset:{4160+4096}
s_mov_b64 exec, -1
v_sub_u32 v{T}, 31, v2
v_and_b32 v{T+1}, 3, v{T}
v_mul_u32_u24 v{T+2}, 4158, v{T+1}
v_lshl_add_u32 v{T}, v{T}, 1, v{T+2}
v_lshl_add_u32 v{T}, v3, 4, v{T}
s_lshl_b32 s18, s13, 10
s_add_u32 s18, s18, s15
v_add_u32 v{FA}, s18, v{T}
v_mul_u32_u24 v{T}, 80, v2
v_lshl_add_u32 v{T}, v3, 4, v{T}
s_mul_i32 s18, s13, 1280
s_add_u32 s18, s18, s15
s_add_u32 s18, s18, {CV_XP}
v_add_u32 v{GA}, s18, v{T}
s_mov_b32 s20, 0
s_waitcnt vmcnt(0) lgkmcnt(0)
K2_c_loop:
s_barrier
""")
    for s in range(2):
        F = FR + 16*s
        a(f"""
ds_read_b64 {vr(F+4,2)}, v{FA} offset:{32*s+2048}
ds_read_b64 {vr(F+6,2)}, v{FA} offset:{32*s+2048+8}
ds_read_b128 {vr(F+8,4)}, v{GA} offset:{32*s}
ds_read_b128 {vr(F+12,4)}, v{GA} offset:{32*s+2560}
ds_read_b64 {vr(F,2)}, v{FA} offset:{32*s}
ds_read_b64 {vr(F+2,2)}, v{FA} offset:{32*s+8}
""")
    a(f"v_add_u32 v{FA}, 64, v{FA}\nv_add_u32 v{GA}, 80, v{GA}")
    for s in range(2):
        F = FR + 16*s
        a(f"""
s_waitcnt lgkmcnt({6-6*s})
v_mfma_f32_32x32x16_bf16 {vr(A0,16)}, {vr(F+4,4)}, {vr(F+8,4)}, {vr(A0,16)}
v_mfma_f32_32x32x16_bf16 {vr(A1,16)}, {vr(F+4,4)}, {vr(F+12,4)}, {vr(A1,16)}
v_mfma_f32_32x32x16_bf16 {vr(A1,16)}, {vr(F,4)}, {vr(F+8,4)}, {vr(A1,16)}
""")
    a(f"""
s_add_u32 s20, s20, 1
s_cmp_lt_u32 s20, 16
s_cbranch_scc1 K2_c_loop
s_lshl_b32 s18, s3, 12
s_add_u32 s18, s18, {CV_EX}
v_add_u32 v{T}, s18, v1
v_xor_b32 v{T+1}, 4096, v{T}
s_nop 4
s_cmp_eq_u32 s13, 0
s_cbranch_scc1 K2_c_noswap
""")
    for i in range(16):
        a(f"v_swap_b32 v{A0+i}, v{A1+i}")
    a("K2_c_noswap:")
    for i in range(4):
        a(f"ds_write_b128 v{T}, {vr(A1+4*i,4)} offset:{1024*i}")
    a("s_waitcnt lgkmcnt(0)\ns_barrier")
    for i in range(4):
        a(f"ds_read_b128 {vr(A1+4*i,4)}, v{T+1} offset:{1024*i}")
    a(f"""
v_lshlrev_b32 v{T}, 6, v2
v_lshl_add_u32 v{T}, v3, 4, v{T}
s_lshl_b32 s18, s14, 12
s_lshl_b32 s19, s13, 11
s_add_u32 s18, s18, s19
s_add_u32 s18, s18, {YT_OFF}
s_waitcnt lgkmcnt(0)
""")
    for i in range(16):
        a(f"v_add_f32 v{A0+i}, v{A0+i}, v{A1+i}")
    for i in range(8):
        a(f"v_cvt_pk_bf16_f32 v{A0+i}, v{A0+2*i}, v{A0+2*i+1}")
    a("s_nop 1")
    for p in range(2):
        a(f"v_permlane32_swap_b32 v{A0+4*p}, v{A0+4*p+2}\nv_permlane32_swap_b32 v{A0+4*p+1}, v{A0+4*p+3}")
    for p in range(2):
        a(f"buffer_store_dwordx4 {vr(A0+4*p,4)}, v{T}, s[8:11], s18 offen offset:{32*p}")
```

```python
from asmlib import *
from layout import *

K3_GRID = 224
K3_BLOCK = 256
W_B = 0
O_B = 57344
Y_B = 114688
K3_LDS = Y_B + 8192
K3_VGPR = 64

def gen_k3(a):
    WA, T = 4, 6
    WR, OR_, YR, G = 10, 11, 12, 13
    F = 16
    ACC = 48
    a(f"""
.p2align 8
k3_kernel:
s_cmp_ge_u32 s2, 224
s_cbranch_scc1 K3_end
s_load_dwordx2 s[4:5], s[0:1], 16
s_load_dwordx2 s[8:9], s[0:1], 104
s_load_dwordx2 s[12:13], s[0:1], 88
v_lshrrev_b32 v1, 6, v0
v_and_b32 v0, 63, v0
v_readfirstlane_b32 s3, v1
s_mov_b32 s6, {448*896}
s_mov_b32 s7, 0x20000
s_mov_b32 s10, {WS_BYTES}
s_mov_b32 s11, 0x20000
s_mov_b32 s14, {2048*896}
s_mov_b32 s15, 0x20000
s_and_b32 s16, s2, 7
s_bfe_u32 s17, s2, 0x20003
s_lshr_b32 s18, s2, 5
s_lshl2_add_u32 s19, s16, s17
s_and_b32 s20, s3, 1
s_lshr_b32 s21, s3, 1
v_lshlrev_b32 v1, 4, v0
v_and_b32 v2, 31, v0
v_lshrrev_b32 v3, 5, v0
v_lshrrev_b32 v{T}, 2, v0
v_and_b32 v{T+1}, 3, v0
v_lshlrev_b32 v{T+1}, 4, v{T+1}
v_mul_u32_u24 v{WA}, 896, v{T}
v_add_u32 v{WA}, v{WA}, v{T+1}
v_lshl_add_u32 v{T}, v{T}, 12, v{T+1}
s_lshl1_add_u32 s22, s18, s21
s_lshl_b32 s22, s22, 17
s_lshl1_add_u32 s23, s19, s20
s_lshl_b32 s24, s23, 6
s_add_u32 s22, s22, s24
s_add_u32 s22, s22, {YT_OFF}
s_lshl_b32 s25, s3, 11
s_add_u32 s25, s25, {Y_B}
s_mov_b32 m0, s25
s_add_u32 s24, s22, {65536-1024}
v_lshlrev_b32 v{T+1}, 2, v2
s_lshl_b32 s26, s23, 7
s_add_u32 s26, s26, {G_OFF}
s_waitcnt lgkmcnt(0)
buffer_load_dwordx4 v{T}, s[8:11], s22 offen lds
buffer_load_dwordx4 v{T}, s[8:11], s24 offen offset:1024 lds
buffer_load_dword v{G}, v{T+1}, s[8:11], s26 offen
s_mul_i32 s27, s3, 28672
s_mov_b32 m0, s27
s_mov_b32 s28, 0
s_cmp_ge_u32 s3, 2
s_cbranch_scc1 K3_ldO
s_lshl1_add_u32 s29, s18, s20
s_lshl_b32 s29, s29, 6
K3_lw:
buffer_load_dwordx4 v{WA}, s[4:7], s29 offen lds
s_add_u32 m0, m0, 1024
s_add_u32 s29, s29, {16*896}
s_add_u32 s28, s28, 1
s_cmp_lt_u32 s28, 28
s_cbranch_scc1 K3_lw
s_branch K3_ld_done
K3_ldO:
s_mul_i32 s29, s23, {O_T}
s_add_u32 s29, s29, {O_OFF}
K3_lo:
buffer_load_dwordx4 v1, s[8:11], s29 offen lds
buffer_load_dwordx4 v1, s[8:11], s29 offen offset:1024 lds
buffer_load_dwordx4 v1, s[8:11], s29 offen offset:2048 lds
buffer_load_dwordx4 v1, s[8:11], s29 offen offset:3072 lds
s_add_u32 m0, m0, 4096
s_add_u32 s29, s29, 4096
s_add_u32 s28, s28, 4
s_cmp_lt_u32 s28, 28
s_cbranch_scc1 K3_lo
K3_ld_done:
;STAMP 0
; W tr read base: (8hf + i/4)*64 + ((l>>4)&1)*32 + (i%4)*8 + ct*28672
v_bfe_u32 v{T}, v0, 2, 2
v_and_b32 v{T+2}, 16, v0
v_lshlrev_b32 v{T+2}, 1, v{T+2}
v_and_b32 v{T+3}, 3, v0
v_lshl_add_u32 v{T+2}, v{T+3}, 3, v{T+2}
v_lshl_add_u32 v{T+1}, v3, 3, v{T}
v_lshl_add_u32 v{T+1}, v{T+1}, 6, v{T+2}
s_mul_i32 s27, s21, 28672
v_add_u32 v{WR}, s27, v{T+1}
; y tr read base: (4hf + i/4)*64 + ((l>>4)&1)*32 + (i%4)*8
v_lshl_add_u32 v{T+1}, v3, 2, v{T}
v_lshl_add_u32 v{T+1}, v{T+1}, 6, v{T+2}
v_add_u32 v{YR}, s25, v{T+1}
v_lshlrev_b32 v{T}, 3, v2
v_lshl_add_u32 v{T}, v3, 9, v{T}
s_mul_i32 s27, s20, 28672
s_add_u32 s27, s27, {O_B}
v_add_u32 v{OR_}, s27, v{T}
""")
    for i in range(16):
        a(f"v_mov_b32 v{ACC+i}, 0")
    def rd(s, Fx):
        a(f"""
ds_read_b64_tr_b16 {vr(Fx,2)}, v{WR} offset:{1024*s}
ds_read_b64_tr_b16 {vr(Fx+2,2)}, v{WR} offset:{1024*s+256}
ds_read_b64 {vr(Fx+4,2)}, v{OR_} offset:{1024*s}
ds_read_b64 {vr(Fx+6,2)}, v{OR_} offset:{1024*s+256}
""")
    a("""
s_mov_b32 s28, 0
K3_loop:
s_waitcnt vmcnt(21)
s_cmp_lt_u32 s28, 1
s_cbranch_scc1 K3_bar
s_waitcnt vmcnt(14)
s_cmp_lt_u32 s28, 2
s_cbranch_scc1 K3_bar
s_waitcnt vmcnt(7)
s_cmp_lt_u32 s28, 3
s_cbranch_scc1 K3_bar
s_waitcnt vmcnt(0)
K3_bar:
s_barrier
""")
    sets = [F, F + 8, F + 16]
    rd(0, sets[0]); rd(1, sets[1]); rd(2, sets[2])
    for s in range(7):
        left = min(2, 6 - s)
        a(f"s_waitcnt lgkmcnt({4*left})")
        Fx = sets[s % 3]
        a(f"v_mfma_f32_32x32x16_bf16 {vr(ACC,16)}, {vr(Fx,4)}, {vr(Fx+4,4)}, {vr(ACC,16)}")
        if s + 3 < 7: rd(s + 3, Fx)
    a(f"""
v_add_u32 v{WR}, 7168, v{WR}
v_add_u32 v{OR_}, 7168, v{OR_}
s_add_u32 s28, s28, 1
s_cmp_lt_u32 s28, 4
s_cbranch_scc1 K3_loop
;STAMP 1
""")
    for q in range(4):
        a(f"ds_read_b64_tr_b16 {vr(F+2*q,2)}, v{YR} offset:{512*q}")
    a(f"""
v_sub_f32 v{G+1}, 1.0, v{G}
v_mul_u32_u24 v{T}, 896, v2
v_lshl_add_u32 v{T}, v3, 4, v{T}
s_mul_i32 s27, s23, {32*896}
s_lshl1_add_u32 s29, s18, s21
s_lshl_b32 s29, s29, 6
s_add_u32 s27, s27, s29
s_waitcnt lgkmcnt(0)
""")
    for i in range(8):
        a(f"""
v_lshlrev_b32 v{F+8+2*i}, 16, v{F+i}
v_and_b32 v{F+9+2*i}, 0xffff0000, v{F+i}
""")
    for i in range(16):
        a(f"v_mul_f32 v{F+8+i}, v{F+8+i}, v{G+1}")
    for i in range(16):
        a(f"v_fmac_f32 v{F+8+i}, v{ACC+i}, v{G}")
    for i in range(8):
        a(f"v_cvt_pk_bf16_f32 v{F+i}, v{F+8+2*i}, v{F+9+2*i}")
    a("s_nop 1")
    for p in range(2):
        a(f"v_permlane32_swap_b32 v{F+4*p}, v{F+4*p+2}\nv_permlane32_swap_b32 v{F+4*p+1}, v{F+4*p+3}")
    for p in range(2):
        a(f"buffer_store_dwordx4 {vr(F+4*p,4)}, v{T}, s[12:15], s27 offen offset:{32*p}")
    a("K3_end:\ns_endpgm")
```

```python
QKV_OFF = 0
QKV_T = 336 * 256
XT_OFF = 6 << 20
KR_OFF = 8 << 20
KR_STRIDE = 4224
G_OFF = 10 << 20
YT_OFF = 11 << 20
O_OFF = 13 << 20
O_T = 112 * 256
WS_BYTES = 16 << 20
import math, struct
def f2u(x): return struct.unpack("<I", struct.pack("<f", x))[0]
LOG2E = math.log2(math.e)
QSCALE = LOG2E / math.sqrt(28.0)
```

```python
import sys
from asmlib import *
from layout import *
import k1
NAME = "gated_mix__mha_block__ssm_conv_s4d__prompt"
def header():
    ref = open(f"cdna_kernels/{NAME}.s.ref").read().split("\n")
    return "\n".join(l for l in ref if l.startswith(";") and "@launch" not in l and "Override launch" not in l and "grid=ceil" not in l) + "\n"
def build(kernels):
    h = header()
    for name, grid, block, lds, _, _ in kernels:
        h += f"; @launch kernel={name} grid=({grid},1,1) block=({block},1,1) lds={lds}\n"
    h += '.amdgcn_target "amdgcn-amd-amdhsa--gfx950"\n.text\n'
    body = ""
    for name, grid, block, lds, fn, vg in kernels:
        a = Asm()
        a(f".globl {name}\n.type {name},@function")
        fn(a)
        t = a.text()
        check_hazards(t)
        body += t
    tail = '.section .rodata,"a"\n'
    for name, grid, block, lds, fn, vg in kernels:
        tail += kd(name, vg)
    return h + body + tail
if __name__ == "__main__":
    ks = [("k1_kernel", 256, 768, k1.K1_LDS, k1.gen_k1, 104)]
    try:
        import k2
        ks.append(("k2_kernel", 256, 768, k2.K2_LDS, k2.gen_k2, k2.K2_VGPR))
        import k3
        ks.append(("k3_kernel", k3.K3_GRID, k3.K3_BLOCK, k3.K3_LDS, k3.gen_k3, k3.K3_VGPR))
    except ImportError:
        pass
    out = sys.argv[1] if len(sys.argv) > 1 else f"cdna_kernels/{NAME}.s"
    open(out, "w").write(build(ks))
```

```python
from asmlib import *
from layout import *
import os
NAME = "gated_mix__mha_block__ssm_conv_s4d__prompt_kernel"
SPIN = 400000
CH_AREA = 30464; W_AREA = 15232
TAB = 16; TABB = 107 * 256; CPY = 2688; XP = 19328
MISC = 60928
RING = 65536
WO_B = 65536; CEX = 98304; VR = 122880; VSLOT = 2368; VWAVE = 4 * VSLOT
LDS_BYTES = 163840
VGPRS = 224
SL = 272

def spin_global(a, lab, dst2, vaddr, soff, cnt="s60"):
    a(f"""
s_mov_b32 {cnt}, 0
{lab}:
buffer_load_dwordx2 {vr(dst2,2)}, v{vaddr}, s[12:15], {soff} offen sc1
s_add_u32 {cnt}, {cnt}, 1
s_cmp_gt_u32 {cnt}, {SPIN}
s_cbranch_scc1 L_end
s_waitcnt vmcnt(0)
v_cmp_ne_u64 vcc, {vr(dst2,2)}, s[62:63]
s_cbranch_vccnz {lab}
""")

def spin_lds(a, lab, vaddr, off, val, tmp, cnt="s60"):
    a(f"""
s_mov_b32 {cnt}, 0
{lab}:
ds_read_b32 v{tmp}, v{vaddr} offset:{off}
s_add_u32 {cnt}, {cnt}, 1
s_cmp_gt_u32 {cnt}, {SPIN*8}
s_cbranch_scc1 L_end
s_waitcnt lgkmcnt(0)
v_cmp_ne_u32 vcc, {val}, v{tmp}
s_cbranch_vccnz {lab}
""")

def token_issue(a, t2, z):
    a(f"v_mov_b32 v{z}, 0\nglobal_load_dwordx2 {vr(t2,2)}, v{z}, s[48:49] sc1")

def token_finish(a, lab, t2, z):
    a(f"""
s_mov_b32 s60, 0
{lab}:
v_readfirstlane_b32 s62, v{t2}
v_readfirstlane_b32 s63, v{t2+1}
s_cmp_lg_u64 s[62:63], 0
s_cbranch_scc1 {lab}_ok
global_load_dwordx2 {vr(t2,2)}, v{z}, s[48:49] sc1
s_add_u32 s60, s60, 1
s_cmp_gt_u32 s60, {SPIN}
s_cbranch_scc1 L_end
s_waitcnt vmcnt(0)
s_branch {lab}
{lab}_ok:
""")

def publish(a, t2, z, soff):
    a(f"""
s_mov_b64 exec, 1
buffer_store_dwordx2 {vr(t2,2)}, v{z}, s[12:15], {soff} offen sc1
s_mov_b64 exec, -1
""")

def gen(a):
    a(f"""
.p2align 8
{NAME}:
s_cmp_ge_u32 s2, 256
s_cbranch_scc1 L_end
s_load_dwordx2 s[4:5], s[0:1], 0
s_load_dwordx2 s[8:9], s[0:1], 8
s_load_dwordx2 s[12:13], s[0:1], 104
s_load_dwordx16 s[16:31], s[0:1], 32
s_load_dwordx2 s[48:49], s[0:1], 96
s_load_dwordx2 s[52:53], s[0:1], 16
s_load_dwordx2 s[56:57], s[0:1], 88
s_memrealtime s[64:65]
v_lshrrev_b32 v1, 6, v0
v_and_b32 v0, 63, v0
v_readfirstlane_b32 s3, v1
s_mov_b32 s6, {2048*896}
s_mov_b32 s7, 0x20000
s_mov_b32 s10, {448*2688}
s_mov_b32 s11, 0x20000
s_mov_b32 s14, {WS_BYTES}
s_mov_b32 s15, 0x20000
s_mov_b32 s54, {448*896}
s_mov_b32 s55, 0x20000
s_mov_b32 s58, {2048*896}
s_mov_b32 s59, 0x20000
v_lshlrev_b32 v1, 4, v0
v_and_b32 v2, 31, v0
v_lshrrev_b32 v3, 5, v0
s_bfe_u32 s32, s2, 0x20003
s_and_b32 s34, s2, 4
s_add_u32 s34, s34, s32
s_lshr_b32 s33, s2, 5
s_and_b32 s35, s2, 3
s_lshl3_add_u32 s35, s35, s33
s_lshl_b32 s61, s34, 5
s_add_u32 s61, s61, s35
s_lshl_b32 s61, s61, 7
s_cmp_eq_u32 s34, 7
s_cbranch_scc1 L_gate
s_cmp_ge_u32 s3, 4
s_cbranch_scc1 L_aux
""")
    gemm(a)
    attn(a)
    outproj(a)
    aux(a)
    gate(a)
    slow(a)
    a("L_end:\ns_endpgm\nL_code_end:")

def gemm(a):
    XA0, XA1, WA = 4, 5, 6
    XR, WR = 8, 12
    XC, WC = 14, 18
    T0, T1, T2 = 20, 21, 22
    FA, FB = 24, 40
    ACC = 56
    a(f"""
s_setprio 2
v_lshrrev_b32 v{T0}, 3, v0
s_lshl_b32 s36, s35, 6
s_lshl_b32 s37, s3, 4
s_add_u32 s36, s36, s37
v_add_u32 v{T0}, s36, v{T0}
v_mul_u32_u24 v{T0}, 896, v{T0}
v_lshrrev_b32 v{T1}, 4, v0
v_xor_b32 v{T1}, v{T1}, v0
v_and_b32 v{T1}, 7, v{T1}
v_lshl_add_u32 v{XA0}, v{T1}, 4, v{T0}
v_xor_b32 v{T1}, 4, v{T1}
v_lshl_add_u32 v{XA1}, v{T1}, 4, v{T0}
v_add_u32 v{XA1}, {8*896 - 1024}, v{XA1}
v_lshrrev_b32 v{T0}, 2, v0
v_add_u32 v{T0}, s37, v{T0}
v_mul_u32_u24 v{T0}, 2688, v{T0}
v_and_b32 v{T1}, 3, v0
v_lshl_add_u32 v{WA}, v{T1}, 4, v{T0}
; first sigma = ((r>>2) + 2*(r&3)) % 7
s_lshl1_add_u32 s39, s32, s33
s_cmp_ge_u32 s39, 7
s_cselect_b32 s38, 7, 0
s_sub_u32 s39, s39, s38
s_mul_i32 s40, s34, 384
s_lshl_b32 s41, s3, 11
s_add_u32 s41, s41, {RING}
s_lshl_b32 s42, s3, 10
s_sub_u32 s42, {8192}, s42
s_mov_b32 s43, 0
s_lshl_b32 s46, s39, 7
s_mul_i32 s47, s39, {64*2688}
s_add_u32 s47, s47, s40
s_waitcnt lgkmcnt(0)
""")
    dma = [f"buffer_load_dwordx4 v{XA0}, s[4:7], s46 offen lds",
           f"buffer_load_dwordx4 v{XA1}, s[4:7], s46 offen offset:1024 lds"] + \
          [f"buffer_load_dwordx4 v{WA}, s[8:11], s47 offen offset:{64*ct} lds" for ct in range(6)]
    pre = ["s_mov_b32 m0, s41", None, "s_add_u32 m0, s41, s42"] + [f"s_add_u32 m0, m0, {4096-64}"] * 5
    adv = f"""
s_add_u32 s39, s39, 1
s_cmp_eq_u32 s39, 7
s_cselect_b32 s39, 0, s39
s_lshl_b32 s46, s39, 7
s_mul_i32 s47, s39, {64*2688}
s_add_u32 s47, s47, s40
s_add_u32 s41, s41, 32768
""".strip().split("\n")
    a("G_pro:")
    for p, d in zip(pre, dma):
        if p: a(p + "\ns_nop 0")
        a(d)
    a("\n".join(adv))
    a(f"""
s_add_u32 s43, s43, 1
s_cmp_lt_u32 s43, 2
s_cbranch_scc1 G_pro
;STAMP 0
s_and_b32 s44, s3, 1
s_lshr_b32 s45, s3, 1
v_bfe_u32 v{T2}, v0, 1, 3
v_xor_b32 v{T2}, v{T2}, v3
v_lshlrev_b32 v{T2}, 4, v{T2}
v_lshl_add_u32 v{T2}, v2, 7, v{T2}
s_lshl_b32 s36, s44, 12
s_add_u32 s36, s36, {RING}
v_add_u32 v{XR}, s36, v{T2}
v_xor_b32 v{XR+1}, 32, v{XR}
v_xor_b32 v{XR+2}, 64, v{XR}
v_xor_b32 v{XR+3}, 96, v{XR}
v_bfe_u32 v{T0}, v0, 2, 2
v_lshl_add_u32 v{T0}, v3, 3, v{T0}
v_lshlrev_b32 v{T0}, 6, v{T0}
v_and_b32 v{T2}, 16, v0
v_lshl_add_u32 v{T0}, v{T2}, 1, v{T0}
v_and_b32 v{T2}, 3, v0
v_lshl_add_u32 v7, v{T2}, 3, v{T0}
s_mul_i32 s36, s45, 12288
s_add_u32 s36, s36, {RING+8192}
v_add_u32 v{WR}, s36, v7
""")
    for i in range(5):
        a(f"v_mov_b32 v{XC+i}, v{XR+i}")
    for i in range(64):
        a(f"v_mov_b32 v{FB+i}, 0")
    a("s_mov_b32 s43, 0\ns_mov_b32 s50, 0")
    def rd(u, F):
        a(f"ds_read_b128 {vr(F,4)}, v{XC+u}")
        for c in range(3):
            for t in range(2):
                a(f"ds_read_b64_tr_b16 {vr(F+4+4*c+2*t,2)}, v{WC} offset:{c*4096+u*1024+t*256}")
    def mf(F, c):
        a(f"v_mfma_f32_32x32x16_bf16 {vr(ACC+16*c,16)}, {vr(F+4+4*c,4)}, {vr(F,4)}, {vr(ACC+16*c,16)}")
    side = [[] for _ in range(12)]
    side[0] = [pre[0]]
    k = 1
    for i in range(8):
        side[k].append(dma[i])
        if i + 1 < 8 and pre[i + 1]: side[k].append(pre[i + 1])
        k += 1
    side[9] = adv + [f"s_cmp_ge_u32 s41, {RING+98304}", "s_cselect_b32 s36, 98304, 0", "s_sub_u32 s41, s41, s36"]
    side[10] = ["s_cmp_ge_u32 s43, 4", "s_cselect_b32 s41, 0x30000, s41", "s_cselect_b32 s46, 0x70000000, s46", "s_cselect_b32 s47, 0x70000000, s47",
                "s_add_u32 s50, s50, 32768", "s_cmp_eq_u32 s50, 98304", "s_cselect_b32 s50, 0, s50"] + \
               [f"v_add_u32 v{XC+i}, s50, v{XR+i}" for i in range(5)]
    side[11] = ["s_add_u32 s43, s43, 1", "s_cmp_lt_u32 s43, 7"]
    a("""
.p2align 3
G_loop:
s_waitcnt vmcnt(8) lgkmcnt(0)
s_barrier
;STAMPI
""")
    rd(0, FA)
    n = 0
    for g, (F, u) in enumerate(((FB, 1), (FA, 2), (FB, 3), (FA, None))):
        if g: a("s_waitcnt lgkmcnt(7)")
        for c in range(3):
            mf(F, c)
            if c == 2 and u is not None: rd(u, F)
            for s in side[n]: a(s)
            n += 1
    a("s_cbranch_scc1 G_loop\ns_waitcnt lgkmcnt(0)")
    for c in range(3): mf(FB, c)
    TK, Z = 8, 10
    a(f"""
;STAMP 1
s_setprio 0
""")
    token_issue(a, TK, Z)
    a(f"""
v_mul_u32_u24 v{T0}, {512+64}, v3
v_lshlrev_b32 v{T1}, 4, v2
v_xor_b32 v{XC}, v{T0}, v{T1}
v_xor_b32 v{XC+1}, 128, v{XC}
s_lshl1_add_u32 s36, s35, s44
s_mul_i32 s36, s36, {QKV_T}
s_lshl1_add_u32 s37, s34, s45
s_mul_i32 s37, s37, 3
s_lshl_b32 s38, s37, 11
s_add_u32 s36, s36, s38
""")
    for c in range(3):
        A = ACC + 16*c
        a(f"s_cmp_lt_u32 s37, {14-c}\ns_cbranch_scc0 G_noscale{c}\ns_mov_b32 s38, {hex(f2u(QSCALE))}")
        for i in range(8):
            a(f"v_pk_mul_f32 {vr(A+2*i,2)}, {vr(A+2*i,2)}, s[38:39] op_sel_hi:[1,0]")
        a(f"G_noscale{c}:")
        for i in range(8):
            a(f"v_cvt_pk_bf16_f32 v{A+i}, v{A+2*i}, v{A+2*i+1}")
        a("s_nop 0")
        for p in range(2):
            a(f"v_permlane32_swap_b32 v{A+4*p}, v{A+4*p+2}\nv_permlane32_swap_b32 v{A+4*p+1}, v{A+4*p+3}")
        for p in range(2):
            a(f"buffer_store_dwordx4 {vr(A+4*p,4)}, v{XC+p}, s[12:15], s36 offen offset:{1024*p} sc1")
        if c < 2: a("s_add_u32 s36, s36, 2048")
    a("s_mov_b32 s51, 1")

KA, VA, TT = 4, 12, 16
VF, P, Q, S, O, KF = 24, 32, 40, [72, 88], 104, 168
NM = 120
OK_ = O + 48
TK, Z = 8, 10

def rdV(a, slot, u):
    for t in range(2):
        a(f"ds_read_b64_tr_b16 {vr(VF+4*u+2*t,2)}, v{VA+t} offset:{slot*VSLOT+256*u}")
def qk(a, Sx, kb, q, u, c0="0"):
    c = c0 if u == 0 else vr(Sx, 16)
    a(f"v_mfma_f32_32x32x16_bf16 {vr(Sx,16)}, {vr(KF+8*kb+4*u,4)}, {vr(Q+8*q+4*u,4)}, {c}")
def pv(a, q, u):
    a(f"v_mfma_f32_32x32x16_bf16 {vr(O+16*q,16)}, {vr(VF+4*u,4)}, {vr(P+4*u,4)}, {vr(O+16*q,16)}")

def attn(a):
    T = TT
    a(f"""
L_attn:
s_and_b32 s36, s2, 7
s_bfe_u32 s39, s2, 0x10003
s_lshl1_add_u32 s36, s36, s39
s_lshr_b32 s37, s2, 4
s_mul_i32 s38, s36, 7
s_lshr_b32 s38, s38, 1
v_lshlrev_b32 v{T}, 4, v2
v_add_u32 v{T+1}, s38, v3
v_and_b32 v{T+1}, 3, v{T+1}
v_lshlrev_b32 v{T+1}, 6, v{T+1}
v_xor_b32 v{T+1}, v{T+1}, v{T}
v_lshl_add_u32 v{KA}, v3, 9, v{T+1}
v_xor_b32 v{KA+1}, 128, v{KA}
s_mul_i32 s40, s3, {VWAVE}
s_add_u32 s40, s40, {VR}
v_bfe_u32 v{T}, v0, 4, 1
v_bfe_u32 v{T+1}, v0, 1, 1
v_lshl_add_u32 v{T}, v{T}, 1, v{T+1}
v_bfe_u32 v{T+1}, v0, 2, 2
v_lshl_add_u32 v{T+1}, v3, 2, v{T+1}
v_lshlrev_b32 v{T+1}, 4, v{T+1}
v_add_u32 v{T+2}, s38, v{T}
v_and_b32 v{T+2}, 3, v{T+2}
v_lshlrev_b32 v{T+2}, 6, v{T+2}
v_xor_b32 v{T+1}, v{T+1}, v{T+2}
v_lshl_add_u32 v{T+1}, v{T}, 9, v{T+1}
v_and_b32 v{T+2}, 1, v0
v_lshl_add_u32 v{T+1}, v{T+2}, 3, v{T+1}
v_xor_b32 v{T+2}, 128, v{T+1}
s_movk_i32 s41, 0x1111
s_cmp_eq_u32 s39, 0
s_cselect_b32 exec_lo, 0x88880000, s41
s_mov_b32 exec_hi, exec_lo
v_mov_b32 v{T+1}, 2048
v_mov_b32 v{T+2}, 2048
s_mov_b64 exec, -1
v_add_u32 v{VA}, s40, v{T+1}
v_add_u32 v{VA+1}, s40, v{T+2}
v_lshrrev_b32 v{T}, 1, v0
v_mul_u32_u24 v{T}, {VSLOT}, v{T}
v_and_b32 v{T+1}, 1, v0
v_lshl_add_u32 v{T}, v{T+1}, 8, v{T}
v_add_u32 v{T}, s40, v{T}
v_mov_b32 v{T+2}, 0x3f80
v_mov_b32 v{T+3}, 0
s_mov_b64 exec, 0xff
ds_write_b64 v{T}, {vr(T+2,2)} offset:2048
s_mov_b64 exec, -1
v_bfe_u32 v{T}, v0, 4, 1
v_add_u32 v{T}, 1, v{T}
s_lshl_b32 s41, s3, 3
v_and_b32 v{T+1}, 7, v0
v_add_u32 v{T+1}, s41, v{T+1}
s_lshl_b32 s41, s37, 1
s_mov_b32 exec_lo, 0
v_mov_b32 v{T}, 0
v_and_b32 v{T+1}, 1, v0
v_add_u32 v{T+1}, s41, v{T+1}
s_mov_b32 exec_lo, -1
v_mul_u32_u24 v{T}, 56, v{T}
v_bfe_u32 v{T+2}, v0, 3, 1
v_mad_u32_u24 v{T}, v{T+2}, 3, v{T}
v_add_u32 v{T}, s38, v{T}
v_mul_u32_u24 v{T}, 171, v{T}
v_lshrrev_b32 v{T}, 12, v{T}
v_lshl_add_u32 v{T}, v{T}, 5, v{T+1}
v_lshlrev_b32 v{T}, 7, v{T}
s_mul_i32 s16, s3, {16*QKV_T}
s_add_u32 s41, s38, 56
s_lshl_b32 s41, s41, 9
s_add_u32 s16, s16, s41
s_add_u32 s17, s16, {16*QKV_T}
s_mul_i32 s18, s37, {QKV_T}
s_add_u32 s16, s16, s18
s_mov_b32 s18, s16
""")
    for i in range(64):
        a(f"v_mov_b32 v{O+i}, 0")
    for i in range(4):
        a(f"v_mov_b32 v{P+4+i}, 0\nv_mov_b32 v{VF+4+i}, 0")
    a(f"""
s_cmp_eq_u32 s51, 0
s_cbranch_scc1 A_poll
s_waitcnt vmcnt(0)
;STAMP 2
v_mov_b32 v{T+1}, 1
v_mov_b32 v{T+2}, {MISC}
s_mov_b64 exec, 1
ds_add_rtn_u32 v{T+1}, v{T+2}, v{T+1}
s_mov_b64 exec, -1
""")
    token_finish(a, "A_tok", TK, Z)
    a(f"""
s_waitcnt lgkmcnt(0)
v_readfirstlane_b32 s68, v{T+1}
s_cmp_lg_u32 s68, 3
s_cbranch_scc1 A_poll
s_add_u32 s41, s61, {FQ_OFF}
""")
    publish(a, TK, Z, "s41")
    a(f"A_poll:\ns_mov_b32 s41, {FQ_OFF}")
    spin_global(a, "A_spin", T + 2, T, "s41")
    a(";STAMP 3")
    ldK = lambda kb: [f"buffer_load_dwordx4 {vr(KF+8*kb,4)}, v{KA}, s[12:15], s16 offen sc1",
                      f"buffer_load_dwordx4 {vr(KF+8*kb+4,4)}, v{KA+1}, s[12:15], s16 offen offset:1024 sc1"]
    ldV = ["buffer_load_dwordx4 v1, s[12:15], s19 offen sc1 lds", "buffer_load_dwordx4 v1, s[12:15], s19 offen offset:1024 sc1 lds"]
    preV = lambda slot: [f"s_add_u32 m0, s40, {slot*VSLOT}", f"s_add_u32 s19, s16, {56*512}"]
    adv = [f"s_add_u32 s16, s16, {QKV_T}", f"s_sub_u32 s41, s16, {16*QKV_T}", "s_cmp_ge_u32 s16, s17", "s_cselect_b32 s16, s41, s16",
           "s_cmp_eq_u32 s16, s18", "s_cselect_b32 s16, 0x70000000, s16"]
    def ldQ(q):
        a(f"""
s_add_u32 s41, s3, {q+1}
s_and_b32 s41, s41, 3
s_lshl2_add_u32 s41, s37, s41
s_mul_i32 s41, s41, {QKV_T}
s_lshl_b32 s42, s38, 9
s_add_u32 s41, s41, s42
buffer_load_dwordx4 {vr(Q+8*q,4)}, v{KA}, s[12:15], s41 offen sc1
buffer_load_dwordx4 {vr(Q+8*q+4,4)}, v{KA+1}, s[12:15], s41 offen offset:1024 sc1
""")
    for x in preV(0) + ldK(0): a(x)
    for q in range(4): ldQ(q)
    for x in ldV + adv: a(x)
    for t in range(1, 4):
        for x in preV(t) + ldK(t) + ldV + adv: a(x)
    a(f"""
s_waitcnt vmcnt(12) lgkmcnt(0)
;STAMP 4
""")
    rdV(a, 0, 0)
    a("s_cmp_eq_u32 s39, 0\ns_cbranch_scc0 A_odd\ns_mov_b32 exec_lo, 0")
    for q in range(4): a(f"v_mov_b32 v{Q+8*q+6}, 0\nv_mov_b32 v{Q+8*q+7}, 0")
    a("s_branch A_z\nA_odd:\ns_mov_b32 exec_hi, 0")
    for q in range(4): a(f"v_mov_b32 v{Q+8*q}, 0\nv_mov_b32 v{Q+8*q+1}, 0")
    a("A_z:\ns_mov_b64 exec, -1\ns_mov_b32 s43, 0")
    qk(a, S[0], 0, 0, 0); qk(a, S[0], 0, 0, 1)
    a("s_nop 11")
    a(".p2align 3\nA_loop:")
    for t in range(4):
        side = [[[] for _ in range(4)] for _ in range(4)]
        side[0][0] = [("V", t, 1)]
        side[0][1] = [preV(t)[0]]
        side[0][2] = ["s_waitcnt lgkmcnt(2)"]
        side[0][3] = ["s_waitcnt lgkmcnt(0)"]
        side[1][0] = [preV(t)[1]]
        side[1][1] = [ldV[0]]
        side[1][2] = [ldV[1]]
        side[2][2] = [ldK(t)[0]]
        side[2][3] = [ldK(t)[1]]
        side[3][0] = ["s_waitcnt vmcnt(12)"]
        side[3][1] = adv[0:2]
        side[3][2] = adv[2:4]
        side[3][3] = [("V", (t + 1) % 4, 0)] + adv[4:6]
        for q in range(4):
            Sc, Sn = S[q % 2], S[(q + 1) % 2]
            kb = t if q < 3 else (t + 1) % 4
            for g in range(4):
                a(f"v_exp_f32 v{Sc+4*g}, v{Sc+4*g}\nv_exp_f32 v{Sc+4*g+1}, v{Sc+4*g+1}")
                if g == 0: pv(a, (q + 3) % 4, 1)
                elif g == 3: pv(a, q, 0)
                else: qk(a, Sn, kb, (q + 1) % 4, g - 1)
                for s in side[q][g]:
                    if isinstance(s, tuple): rdV(a, s[1], s[2])
                    else: a(s)
                a(f"v_exp_f32 v{Sc+4*g+2}, v{Sc+4*g+2}\nv_exp_f32 v{Sc+4*g+3}, v{Sc+4*g+3}")
                a(f"v_cvt_pk_bf16_f32 v{P+2*g}, v{Sc+4*g}, v{Sc+4*g+1}\nv_cvt_pk_bf16_f32 v{P+2*g+1}, v{Sc+4*g+2}, v{Sc+4*g+3}")
    a(f"""
s_add_u32 s43, s43, 1
s_cmp_lt_u32 s43, 4
s_cbranch_scc1 A_loop
;STAMP 5
s_barrier
""")
    pv(a, 3, 1)
    for q in range(3):
        a(f"""
s_add_u32 s41, s3, {q+1}
s_and_b32 s41, s41, 3
s_mul_i32 s41, s41, 12288
v_add_u32 v{T}, s41, v1
""")
        for i in range(4):
            a(f"ds_write_b128 v{T}, {vr(O+16*q+4*i,4)} offset:{4096*q+1024*i}")
    a(f"""
s_mul_i32 s41, s3, 12288
v_add_u32 v{T}, s41, v1
s_waitcnt lgkmcnt(0)
s_barrier
;STAMP 6
""")
    for i in range(12):
        a(f"ds_read_b128 {vr(O+4*i,4)}, v{T} offset:{1024*i}")
    a(f"""
s_lshl2_add_u32 s42, s37, s3
s_lshl4_add_u32 s42, s42, s36
s_lshl_b32 s42, s42, 11
s_add_u32 s42, s42, {O_OFF}
""")
    for q in range(3):
        a(f"s_waitcnt lgkmcnt({8-4*q})")
        for i in range(8):
            a(f"v_pk_add_f32 {vr(OK_+2*i,2)}, {vr(OK_+2*i,2)}, {vr(O+16*q+2*i,2)}")
    a(f"""
s_mov_b32 s44, 0
A_norm:
s_cmp_eq_u32 s39, 0
s_cbranch_scc0 A_nodd
v_mov_b32 v{T+2}, v{OK_+12}
v_mov_b32 v{T+3}, v{OK_+12}
s_mov_b32 exec_lo, 0
v_mov_b32 v{OK_+12}, 0
s_mov_b32 exec_lo, -1
v_permlane32_swap_b32 v{T+2}, v{T+3}
s_branch A_nj
A_nodd:
v_mov_b32 v{T+2}, v{OK_}
v_mov_b32 v{T+3}, v{OK_}
s_mov_b32 exec_hi, 0
v_mov_b32 v{OK_}, 0
s_mov_b32 exec_hi, -1
v_permlane32_swap_b32 v{T+3}, v{T+2}
A_nj:
s_mov_b32 s46, 0x30800000
s_mov_b32 s47, 0x4e800000
v_rcp_f32 v{T+2}, v{T+3}
v_cmp_nge_f32 vcc, v{T+3}, s46
v_cmp_nle_f32 s[66:67], v{T+3}, s47
s_or_b64 vcc, vcc, s[66:67]
s_cmp_lg_u32 s44, 0
s_cbranch_scc1 A_store
s_cbranch_vccnz L_slow
A_store:
""")
    for i in range(8):
        a(f"v_pk_mul_f32 {vr(OK_+2*i,2)}, {vr(OK_+2*i,2)}, {vr(T+2,2)} op_sel_hi:[1,0]")
    for i in range(8):
        a(f"v_cvt_pk_bf16_f32 v{OK_+i}, v{OK_+2*i}, v{OK_+2*i+1}")
    a("s_nop 0")
    for p in range(2):
        a(f"v_permlane32_swap_b32 v{OK_+4*p}, v{OK_+4*p+2}\nv_permlane32_swap_b32 v{OK_+4*p+1}, v{OK_+4*p+3}")
    for p in range(2):
        a(f"buffer_store_dwordx4 {vr(OK_+4*p,4)}, v1, s[12:15], s42 offen offset:{1024*p} sc1")

def slow(a):
    T = TT
    a(f"""
L_slow:
s_waitcnt vmcnt(0)
s_add_u32 s45, s38, 56
s_lshl_b32 s45, s45, 9
s_mov_b32 m0, s40
""")
    for i in range(16):
        a(f"v_mov_b32 v{OK_+i}, 0\nv_mov_b32 v{NM+i}, 0")
    a(f"""
v_mov_b32 v{T+2}, 0xff800000
S_pass:
s_mov_b32 s43, 0
s_mov_b32 s16, s45
S_loop:
s_add_u32 s19, s16, {56*512}
buffer_load_dwordx4 {vr(KF,4)}, v{KA}, s[12:15], s16 offen sc1
buffer_load_dwordx4 {vr(KF+4,4)}, v{KA+1}, s[12:15], s16 offen offset:1024 sc1
buffer_load_dwordx4 v1, s[12:15], s19 offen sc1 lds
buffer_load_dwordx4 v1, s[12:15], s19 offen offset:1024 sc1 lds
s_add_u32 s16, s16, {QKV_T}
s_waitcnt vmcnt(0)
""")
    rdV(a, 0, 0); rdV(a, 0, 1)
    qk(a, S[0], 0, 3, 0, vr(NM, 16)); qk(a, S[0], 0, 3, 1)
    a("s_nop 11\ns_waitcnt lgkmcnt(0)\ns_cmp_eq_u32 s44, 0\ns_cbranch_scc0 S_exp")
    for i in range(8):
        a(f"v_max3_f32 v{T+2}, v{T+2}, v{S[0]+2*i}, v{S[0]+2*i+1}")
    a("s_branch S_next\nS_exp:")
    for i in range(16):
        a(f"v_exp_f32 v{S[0]+i}, v{S[0]+i}")
    for i in range(8):
        a(f"v_cvt_pk_bf16_f32 v{P+i}, v{S[0]+2*i}, v{S[0]+2*i+1}")
    a("s_nop 1")
    pv(a, 3, 0); pv(a, 3, 1)
    a(f"""
S_next:
s_add_u32 s43, s43, 1
s_cmp_lt_u32 s43, 64
s_cbranch_scc1 S_loop
s_nop 12
s_cmp_eq_u32 s44, 1
s_cbranch_scc1 A_norm
s_mov_b32 s44, 1
v_mov_b32 v{T+3}, v{T+2}
s_nop 1
v_permlane32_swap_b32 v{T+2}, v{T+3}
s_nop 1
v_max_f32 v{T+2}, v{T+2}, v{T+3}
""")
    for i in range(16):
        a(f"v_sub_f32 v{NM+i}, 0, v{T+2}")
    a("s_branch S_pass")

def outproj(a):
    T = TT
    OF = 104
    WF = 24
    AC = [72, 88]
    WR, YR, G = 4, 5, 6
    a(f"""
s_and_b32 s44, s3, 1
s_lshr_b32 s45, s3, 1
s_lshl1_add_u32 s46, s35, s44
; y flags: producers (j, 16ct + l%16)
v_and_b32 v{T}, 15, v0
v_lshlrev_b32 v{T}, 7, v{T}
s_lshl1_add_u32 s47, s34, s45
s_lshl_b32 s41, s47, 11
s_add_u32 s41, s41, {FY_OFF}
s_cmp_eq_u32 s34, 7
s_cbranch_scc1 O_noy
""")
    spin_global(a, "O_spy", T + 2, T, "s41")
    a(f"""
O_noy:
s_waitcnt vmcnt(0)
;STAMP 7
s_barrier
s_cmp_lg_u32 s3, 0
s_cbranch_scc1 O_nopub
s_lshl4_add_u32 s41, s37, s36
s_lshl_b32 s41, s41, 7
s_add_u32 s41, s41, {FO_OFF}
""")
    publish(a, TK, Z, "s41")
    a(f"""
O_nopub:
s_cmp_eq_u32 s34, 7
s_cbranch_scc1 L_end
v_lshrrev_b32 v{T}, 2, v0
v_and_b32 v{T+1}, 3, v0
v_lshlrev_b32 v{T+1}, 4, v{T+1}
v_lshl_add_u32 v{T}, v{T}, 12, v{T+1}
s_lshl_b32 s41, s47, 17
s_lshl_b32 s42, s46, 6
s_add_u32 s41, s41, s42
s_add_u32 s41, s41, {YT_OFF}
s_mov_b32 m0, s40
s_add_u32 s42, s41, {65536-1024}
buffer_load_dwordx4 v{T}, s[12:15], s41 offen sc1 lds
buffer_load_dwordx4 v{T}, s[12:15], s42 offen offset:1024 sc1 lds
v_lshlrev_b32 v{T+1}, 2, v2
s_lshl_b32 s41, s46, 7
s_add_u32 s41, s41, {G_OFF}
buffer_load_dword v{G}, v{T+1}, s[12:15], s41 offen sc1
; W tr base (v7 = (8hf + i/4)*64 + ((l>>4)&1)*32 + (i%4)*8) + kh*224 rows ; y tr base
s_mul_i32 s41, s45, {224*64}
s_add_u32 s41, s41, {WO_B}
v_add_u32 v{WR}, s41, v7
v_lshlrev_b32 v{T}, 8, v3
v_sub_u32 v{T}, v7, v{T}
v_add_u32 v{YR}, s40, v{T}
; O flags: (qb = rbk>>1, h = 8kh + l%8)
v_and_b32 v{T}, 7, v0
v_lshlrev_b32 v{T}, 7, v{T}
s_lshr_b32 s41, s35, 1
s_lshl1_add_u32 s41, s41, s45
s_lshl_b32 s41, s41, 10
s_add_u32 s41, s41, {FO_OFF}
s_lshl1_add_u32 s42, s46, s45
s_lshl_b32 s42, s42, 14
s_add_u32 s42, s42, {O_OFF}
""")
    spin_global(a, "O_spo", T + 2, T, "s41")
    a(";STAMP 8")
    for k in range(16):
        a(f"buffer_load_dwordx4 {vr(OF+4*k,4)}, v1, s[12:15], s42 offen offset:{1024*(k%4)} sc1")
        if k % 4 == 3 and k < 15: a("s_add_u32 s42, s42, 4096")
    def rw(k):
        row = 56 * (k // 4) + (0, 16, 24, 40)[k % 4]
        F = WF + 8 * (k % 2)
        for c in range(2):
            for t in range(2):
                a(f"ds_read_b64_tr_b16 {vr(F+4*c+2*t,2)}, v{WR} offset:{c*28672+row*64+t*256}")
    rw(0); rw(1)
    for k in range(16):
        F = WF + 8 * (k % 2)
        a(f"s_waitcnt vmcnt({15-k}) lgkmcnt({4 if k < 15 else 0})")
        for c in range(2):
            cc = "0" if k == 0 else vr(AC[c], 16)
            a(f"v_mfma_f32_32x32x16_bf16 {vr(AC[c],16)}, {vr(F+4*c,4)}, {vr(OF+4*k,4)}, {cc}")
        if k + 2 < 16: rw(k + 2)
    F = 24
    for q in range(4):
        a(f"ds_read_b64_tr_b16 {vr(F+2*q,2)}, v{YR} offset:{512*q}")
    a(f"""
;STAMP 9
s_lshl_b32 s41, s3, 12
v_add_u32 v{T}, s41, v1
v_xor_b32 v{T+1}, 8192, v{T}
v_sub_f32 v{G+5}, 1.0, v{G}
s_nop 2
s_cmp_eq_u32 s45, 0
s_cbranch_scc1 O_noswap
""")
    for i in range(16):
        a(f"v_swap_b32 v{AC[0]+i}, v{AC[1]+i}")
    a("O_noswap:")
    for i in range(4):
        a(f"ds_write_b128 v{T}, {vr(AC[1]+4*i,4)} offset:{1024*i}")
    a("s_waitcnt lgkmcnt(0)\ns_barrier")
    for i in range(4):
        a(f"ds_read_b128 {vr(AC[1]+4*i,4)}, v{T+1} offset:{1024*i}")
    for i in range(8):
        a(f"v_lshlrev_b32 v{F+8+2*i}, 16, v{F+i}\nv_and_b32 v{F+9+2*i}, 0xffff0000, v{F+i}")
    for i in range(16):
        a(f"v_mul_f32 v{F+8+i}, v{F+8+i}, v{G+5}")
    for i in range(16):
        a(f"v_fmac_f32 v{F+8+i}, v{AC[0]+i}, v{G}")
    a(f"""
v_mul_u32_u24 v{T}, 896, v2
v_lshl_add_u32 v{T}, v3, 4, v{T}
s_mul_i32 s41, s46, {32*896}
s_lshl_b32 s42, s47, 6
s_add_u32 s41, s41, s42
s_waitcnt lgkmcnt(0)
""")
    for i in range(16):
        a(f"v_fmac_f32 v{F+8+i}, v{AC[1]+i}, v{G}")
    for i in range(8):
        a(f"v_cvt_pk_bf16_f32 v{F+i}, v{F+8+2*i}, v{F+9+2*i}")
    a("s_nop 0")
    for p in range(2):
        a(f"v_permlane32_swap_b32 v{F+4*p}, v{F+4*p+2}\nv_permlane32_swap_b32 v{F+4*p+1}, v{F+4*p+3}")
    for p in range(2):
        a(f"buffer_store_dwordx4 {vr(F+4*p,4)}, v{T}, s[56:59], s41 offen offset:{32*p}")
    a("s_endpgm")

from fused_aux import aux, gate
```

```python
from asmlib import *
from layout import *
import fused as F
import os
DUMPK = os.environ.get("DUMPK")

def aux(a):
    SL = F.SL
    TK, Z = 8, 10
    RAW = 12
    DT = 16
    AA = 20
    BA = 24
    MA = 25
    T = 26
    GA = 34
    W = 54
    ST = [58, 62]
    H = [66, 68]
    R = [72, 88]
    PK = 104
    FR = 124
    ACC = 156
    a(f"""
L_aux:
s_sub_u32 s3, s3, 4
s_lshr_b32 s36, s3, 1
s_and_b32 s37, s3, 1
s_lshr_b32 s39, s61, 5
s_lshr_b32 s38, s61, 6
s_add_u32 s38, s38, s36
s_lshl_b32 s40, s38, 9
s_lshl_b32 s41, s37, 8
s_add_u32 s40, s40, s41
v_lshl_add_u32 v{T}, v0, 2, s40
s_getpc_b64 s[66:67]
A_pc:
s_sub_u32 s66, s66, A_pc-{F.NAME}
s_subb_u32 s67, s67, 0
v_lshlrev_b32 v{T+1}, 7, v0
s_lshl_b32 s41, s3, 13
v_add_u32 v{T+1}, s41, v{T+1}
v_min_u32 v{T+1}, L_code_end-{F.NAME}-4, v{T+1}
global_load_dword v{T+2}, v{T+1}, s[66:67]
s_waitcnt lgkmcnt(0)
global_load_dword v{RAW}, v{T}, s[16:17]
global_load_dword v{RAW+1}, v{T}, s[18:19]
global_load_dword v{RAW+2}, v{T}, s[20:21]
global_load_dword v{RAW+3}, v{T}, s[22:23]
s_load_dword s44, s[24:25], s39
s_load_dword s45, s[26:27], s39
v_mov_b32 v{Z}, 0
s_or_b32 s41, s2, s3
s_cmp_lg_u32 s41, 0
s_cbranch_scc1 X_notok
s_or_b32 s64, s64, 1
v_mov_b32 v{TK}, s64
v_mov_b32 v{TK+1}, s65
s_mov_b64 exec, 1
global_store_dwordx2 v{Z}, {vr(TK,2)}, s[48:49] sc0 sc1
s_mov_b64 exec, -1
X_notok:
s_mul_i32 s42, s36, {F.CH_AREA}
s_mul_i32 s43, s3, {F.W_AREA}
s_mov_b32 m0, s43
v_mov_b32 v{MA}, {F.MISC}
v_lshl_add_u32 v{T}, v0, 2, v{MA}
ds_write_b32 v{T}, v{Z}
s_lshl_b32 s41, s3, 2
v_add_u32 v{MA}, s41, v{MA}
""")
    for i in range(16):
        a(f"v_mov_b32 v{ACC+i}, 0")
    a(f"""
v_and_b32 v{T}, 15, v0
v_lshrrev_b32 v{T+3}, 4, v0
v_lshl_add_u32 v{T+1}, v{T+3}, 4, s43
v_mul_u32_u24 v{T+4}, {SL}, v{T}
v_add_u32 v{AA}, v{T+4}, v{T+1}
v_add_u32 v{BA}, {40*SL}, v{AA}
""")
    for e in range(1, 4):
        a(f"v_min_u32 v{T+5}, {8*SL}, v{T+4}\nv_add_u32 v{T+4}, v{T+4}, v{T+5}\nv_add_u32 v{AA+e}, v{T+4}, v{T+1}")
    a(f"""
s_lshl_b32 s41, s37, 10
s_sub_u32 s41, 2047, s41
v_sub_u32 v{T}, s41, v1
v_cvt_f32_i32 v{T+1}, v{T}
s_add_u32 s46, s42, {F.TAB}
""")
    def magic():
        a(f"""
v_ffbh_u32 v{T+4}, v{T}
v_sub_u32 v{T+4}, 24, v{T+4}
v_med3_i32 v{T+4}, v{T+4}, 0, 3
v_lshlrev_b32 v{T+5}, 23, v{T+4}
v_add_u32 v{T+5}, 0x4b400000, v{T+5}
v_lshlrev_b32 v{T+6}, 2, v{T+5}
v_lshl_add_u32 v{T+4}, v{T+4}, 9, s46
v_sub_u32 v{T+4}, v{T+4}, v{T+6}
""")
    magic()
    for k in range(19):
        if k == 16:
            a(f"v_subrev_u32 v{T}, 16, v{T}\nv_max_i32 v{T}, 1, v{T}")
            magic()
        a(f"v_add_f32 v{GA+k}, v{T+1}, v{T+5}")
        if k < 18: a(f"v_add_f32 v{T+1}, -1.0, v{T+1}")
        a(f"v_lshl_add_u32 v{GA+k}, v{GA+k}, 2, v{T+4}")
    a(f"""
s_waitcnt lgkmcnt(0)
s_lshl_b32 s41, s36, 4
s_lshr_b32 s44, s44, s41
s_lshl_b32 s44, s44, 16
s_lshr_b32 s45, s45, s41
s_lshl_b32 s45, s45, 16
v_mov_b32 v{DT+2}, {hex(f2u(LOG2E))}
v_mul_f32 v{DT}, s44, v{DT+2}
v_exp_f32 v{DT}, v{DT}
s_mov_b64 exec, 1
v_mul_f32 v{ACC}, s45, 0.5
s_mov_b64 exec, -1
v_cvt_pk_bf16_f32 v{DT}, v{DT}, v{DT}
v_lshlrev_b32 v{DT}, 16, v{DT}
v_add_f32 v{DT+1}, v{DT}, v{DT}
s_mov_b32 s47, 0
s_waitcnt vmcnt(0)
;STAMP 0
.p2align 3
X_pass:
s_barrier
""")
    def cmul(d, x, w):
        return [f"v_mul_f32 v{d}, v{x}, v{w}", f"v_mul_f32 v{d+1}, v{x+1}, v{w}",
                f"v_fmac_f32 v{d}, v{x+1}, v{w+2}", f"v_fmac_f32 v{d+1}, v{x}, v{w+1}"]
    def csq(d, x, t):
        return [f"v_mul_f32 v{t}, v{x+1}, v{x+1}", f"v_mul_f32_e64 v{d+1}, v{x}, v{x+1} mul:2", f"v_fma_f32 v{d}, v{x}, v{x}, -v{t}"]
    S0 = ST[0]
    a(f"""
v_lshlrev_b32 v{T}, 16, v{RAW}
v_lshlrev_b32 v{T+1}, 16, v{RAW+1}
v_mul_f32 v{T}, v{T}, v{DT+2}
v_exp_f32 v{T}, v{T}
v_mul_f32 v{T+1}, v{T+1}, v{DT}
v_mul_f32 v{T+1}, 0.15915494, v{T+1}
v_cvt_pk_bf16_f32 v{T}, v{T}, v{T}
v_rndne_f32 v{T+2}, v{T+1}
v_lshlrev_b32 v{T}, 16, v{T}
v_sub_f32 v{T+1}, v{T+1}, v{T+2}
v_mul_f32 v{T}, v{T}, v{DT}
v_mul_f32 v{T}, v{T}, -v{DT+2}
v_cos_f32 v{W}, v{T+1}
v_sin_f32 v{W+1}, v{T+1}
v_exp_f32 v{T+2}, v{T}
v_mul_f32 v{T+1}, 0x41800000, v{T+1}
v_mul_f32 v{T}, 0x41800000, v{T}
v_mul_f32 v{W}, v{W}, v{T+2}
v_mul_f32 v{W+1}, v{W+1}, v{T+2}
v_cos_f32 v{S0}, v{T+1}
v_sin_f32 v{S0+2}, v{T+1}
v_exp_f32 v{T+2}, v{T}
v_sub_f32 v{W+2}, 0, v{W+1}
v_lshlrev_b32 v{H[0]}, 16, v{RAW+2}
v_lshlrev_b32 v{H[0]+1}, 16, v{RAW+3}
v_mul_f32 v{S0}, v{S0}, v{T+2}
v_mul_f32 v{S0+2}, v{S0+2}, v{T+2}
v_mul_f32 v{H[0]}, v{H[0]}, v{DT+1}
v_mul_f32 v{H[0]+1}, v{H[0]+1}, -v{DT+1}
v_sub_f32 v{S0+1}, 0, v{S0+2}
""")
    for i in range(4):
        a(f"v_lshrrev_b32 v{RAW+i}, 16, v{RAW+i}")
    R0, R1 = R
    L = lambda k: R0 + 2*k
    U = lambda k: R1 + 2*k
    lo_init = csq(L(2), W, T) + cmul(L(3), L(2), W) + csq(L(4), L(2), T) + cmul(L(5), L(4), W) + csq(L(6), L(3), T) + cmul(L(7), L(6), W)
    lo_b1 = []
    for k in range(4):
        lo_b1 += csq(U(2*k), L(4+k), T) + cmul(U(2*k+1), U(2*k), W)
    lo_sq = []
    for k in range(8): lo_sq += csq(U(k), U(k), T + (k % 2))
    hstate = [0]
    def hi_block(n):
        out = []
        for k in range(n):
            h = H[hstate[0]]
            out.append(f"v_cvt_pk_bf16_f32 v{PK+8+k}, v{h}, v{h+1}")
            if k < 8:
                out += cmul(H[1 - hstate[0]], h, S0); hstate[0] ^= 1
        return out
    def merge(x, y):
        out = []; i = j = 0
        while i < len(x) or j < len(y):
            if j >= len(y) or (i < len(x) and i * len(y) <= j * len(x)): out.append(x[i]); i += 1
            else: out.append(y[j]); j += 1
        return out
    def mfmas(e):
        return [f"v_mfma_f32_16x16x32_bf16 {vr(ACC+4*e,4)}, {vr(FR+8*s,4)}, {vr(FR+8*s+4,4)}, {vr(ACC+4*e,4)}" for s in range(4)]
    nbar = 0
    for b in range(5):
        lo = (lo_init, lo_b1, lo_sq, lo_sq, lo_sq)[b]
        pre_ = []
        if b >= 2: pre_ = csq(S0, S0, T + 2) + [f"v_sub_f32 v{S0+2}, 0, v{S0+1}"]
        if b == 0:
            cv = [f"v_mov_b32 v{PK}, 0x3f80", f"v_cvt_pk_bf16_f32 v{PK+1}, v{W}, v{W+1}"] + [f"v_cvt_pk_bf16_f32 v{PK+k}, v{L(k)}, v{L(k)+1}" for k in range(2, 8)]
        else:
            cv = [f"v_cvt_pk_bf16_f32 v{PK+k}, v{U(k)}, v{U(k)+1}" for k in range(8)]
        body = pre_ + merge(lo + cv, hi_block(9 if b == 4 else 8))
        if b >= 2:
            m = mfmas(b - 2)
            pos = [24, 36, 48, 60]
            nb = []
            for i, x in enumerate(body):
                if i in pos:
                    if i == pos[0]: nb.append("s_waitcnt lgkmcnt(0)")
                    nb.append(m[pos.index(i)])
                nb.append(x)
            body = nb
        barpos = {1: 10, 2: 30, 3: 55}.get(b)
        for i, x in enumerate(body):
            if barpos is not None and i == barpos:
                if b == 3: a("s_cmp_lg_u32 s47, 0\ns_cbranch_scc1 X_nobar\ns_barrier\nX_nobar:")
                else: a("s_barrier")
            a(x)
        for k in range(8):
            a(f"ds_write_addtid_b32 v{PK+k} offset:{(8*b+k)*SL}")
        for k in range(9 if b == 4 else 8):
            a(f"ds_write_addtid_b32 v{PK+8+k} offset:{(40+8*(b%2)+k)*SL}")
        if b >= 1:
            for s in range(4):
                a(f"ds_read_b128 {vr(FR+8*s,4)}, v{AA+b-1} offset:{64*s}")
                a(f"ds_read_b128 {vr(FR+8*s+4,4)}, v{BA} offset:{64*s}")
    assert hstate[0] == 0
    a("s_waitcnt lgkmcnt(0)")
    for x in mfmas(3): a(x)
    a(f"""
s_add_u32 s47, s47, 1
s_cmp_lt_u32 s47, 2
s_cbranch_scc1 X_pass
;STAMP 1
""")
    F.token_issue(a, TK, Z)
    a(f"""
v_and_b32 v{T}, 15, v0
v_lshlrev_b32 v{T}, 6, v{T}
v_lshl_add_u32 v{T}, v{T+3}, 4, v{T}
s_mul_i32 s41, s37, {F.TABB}
s_add_u32 s41, s41, s46
v_add_u32 v{T}, s41, v{T}
v_mov_b32 v{T+4}, 0
v_mov_b32 v{T+5}, 0
v_mov_b32 v{T+6}, 0
v_mov_b32 v{T+7}, 0
v_mov_b32 v{T+1}, 1
s_sub_u32 s41, s41, 16
v_mov_b32 v{T+2}, s41
ds_write_b128 v{T+2}, {vr(T+4,4)}
ds_write_b128 v{T}, {vr(ACC,4)}
s_mov_b32 exec_lo, 0x00ff00ff
s_mov_b32 exec_hi, 0x00ff00ff
ds_write_b128 v{T}, {vr(ACC+4,4)} offset:1024
s_not_b64 exec, exec
ds_write_b128 v{T}, {vr(ACC+8,4)} offset:1024
s_mov_b32 exec_lo, 0x01ff01ff
s_mov_b32 exec_hi, 0x01ff01ff
ds_write_b128 v{T}, {vr(ACC+12,4)} offset:2048
s_mov_b64 exec, -1
s_waitcnt lgkmcnt(0)
ds_write_b32 v{MA}, v{T+1} offset:16
v_xor_b32 v{MA}, 4, v{MA}
s_waitcnt vmcnt(0)
""")
    F.token_finish(a, "X_tok", TK, Z)
    a(f"v_lshlrev_b32 v{T}, 7, v2\ns_mov_b32 s41, {FQ_OFF + 224*128}")
    F.spin_global(a, "X_spx", T + 2, T, "s41")
    a(";STAMP 2")
    F.spin_lds(a, "X_a1", MA, 16, 1, T + 2)
    V = 72
    CP = 112
    for k in range(19):
        a(f"ds_read2st64_b32 {vr(V+2*k,2)}, v{GA+k} offset0:0 offset1:107")
        if k == 14: a("s_waitcnt lgkmcnt(8)")
    a(f"""
s_lshl_b32 s41, s37, 7
v_add_u32 v{T}, s41, v0
s_lshl_b32 s44, s38, 12
s_add_u32 s44, s44, {XT_OFF}
s_lshl_b32 s41, s37, 11
s_add_u32 s41, s41, s42
s_add_u32 m0, s41, {F.XP + 31*80}
""")
    for i in range(3):
        a(f"""
v_mul_u32_u24 v{T+2}, 205, v{T}
v_lshrrev_b32 v{T+2}, 10, v{T+2}
v_sub_u32 v{T+2}, v{T}, v{T+2}
v_lshlrev_b32 v{T+2}, 4, v{T+2}
buffer_load_dwordx4 v{T+2}, s[12:15], s44 offen sc1 lds
""")
        if i < 2: a(f"v_add_u32 v{T}, 64, v{T}\ns_add_u32 m0, m0, 1024")
    a(f"""
v_add_u32 v{T}, s42, v1
s_waitcnt lgkmcnt(0)
ds_write_b128 v{T}, {vr(T+4,4)} offset:{F.XP}
ds_write_b128 v{T}, {vr(T+4,4)} offset:{F.XP+1024}
ds_write_b128 v{T}, {vr(T+4,4)} offset:{F.XP+2480-1024}
s_mov_b64 exec, 15
""")
    for q in range(4):
        a(f"ds_write_b128 v{T}, {vr(T+4,4)} offset:{F.CPY+4160*q+4096}")
    a(f"""
s_mov_b64 exec, -1
v_lshl_add_u32 v{T}, v0, 5, s41
""")
    for k in range(19):
        a(f"v_add_f32 v{V+2*k}, v{V+2*k}, v{V+2*k+1}")
    for q in range(4):
        for i in range(8):
            a(f"v_cvt_pk_bf16_f32 v{CP+8*q+i}, v{V+2*(q+2*i)}, v{V+2*(q+2*i+1)}")
    for q in range(4):
        for i in range(2):
            a(f"ds_write_b128 v{T}, {vr(CP+8*q+4*i,4)} offset:{F.CPY+4160*q+16*i}")
    if DUMPK:
        a(f"""
v_lshlrev_b32 v{T+2}, 5, v0
s_lshl_b32 s44, s38, 12
s_lshl_b32 s45, s37, 11
s_add_u32 s44, s44, s45
s_add_u32 s44, s44, {KD_OFF}
s_cmp_ge_u32 s38, 256
s_cselect_b32 s44, 0x70000000, s44
buffer_store_dwordx4 {vr(CP,4)}, v{T+2}, s[12:15], s44 offen
buffer_store_dwordx4 {vr(CP+4,4)}, v{T+2}, s[12:15], s44 offen offset:16
""")
    FA, GAa = 20, 21
    CF = 72
    A0, A1 = 160, 176
    a(f"""
v_sub_u32 v{T}, 31, v2
v_and_b32 v{T+2}, 3, v{T}
v_mul_u32_u24 v{T+2}, 4158, v{T+2}
v_lshl_add_u32 v{T}, v{T}, 1, v{T+2}
v_lshl_add_u32 v{T}, v3, 4, v{T}
s_lshl_b32 s41, s37, 10
s_add_u32 s41, s41, s42
s_add_u32 s41, s41, {F.CPY}
v_add_u32 v{FA}, s41, v{T}
v_mul_u32_u24 v{T}, 80, v2
v_lshl_add_u32 v{T}, v3, 4, v{T}
s_mul_i32 s41, s37, 1280
s_add_u32 s41, s41, s42
s_add_u32 s41, s41, {F.XP}
v_add_u32 v{GAa}, s41, v{T}
""")
    for i in range(32):
        a(f"v_mov_b32 v{A0+i}, 0")
    a(f"""
v_xor_b32 v{T}, 4, v{MA}
s_waitcnt vmcnt(0) lgkmcnt(0)
ds_write_b32 v{T}, v{T+1} offset:32
""")
    F.spin_lds(a, "X_a2", MA, 32, 1, T + 2)
    a(";STAMP 3")
    def crd(Fx, fo, go):
        a(f"""
ds_read_b64 {vr(Fx+4,2)}, v{FA} offset:{fo+2048}
ds_read_b64 {vr(Fx+6,2)}, v{FA} offset:{fo+2048+8}
ds_read_b128 {vr(Fx+8,4)}, v{GAa} offset:{go}
ds_read_b128 {vr(Fx+12,4)}, v{GAa} offset:{go+2560}
ds_read_b64 {vr(Fx,2)}, v{FA} offset:{fo}
ds_read_b64 {vr(Fx+2,2)}, v{FA} offset:{fo+8}
""")
    crd(CF, 0, 0); crd(CF + 16, 32, 32)
    a("s_mov_b32 s47, 0\n.p2align 3\nX_conv:")
    for s in range(2):
        Fx = CF + 16*s
        a(f"""
s_waitcnt lgkmcnt(6)
v_mfma_f32_32x32x16_bf16 {vr(A0,16)}, {vr(Fx+4,4)}, {vr(Fx+8,4)}, {vr(A0,16)}
v_mfma_f32_32x32x16_bf16 {vr(A1,16)}, {vr(Fx+4,4)}, {vr(Fx+12,4)}, {vr(A1,16)}
v_mfma_f32_32x32x16_bf16 {vr(A1,16)}, {vr(Fx,4)}, {vr(Fx+8,4)}, {vr(A1,16)}
""")
        crd(Fx, 64 + 32*s, 80 + 32*s)
    a(f"""
v_add_u32 v{FA}, 64, v{FA}
v_add_u32 v{GAa}, 80, v{GAa}
s_add_u32 s47, s47, 1
s_cmp_lt_u32 s47, 16
s_cbranch_scc1 X_conv
;STAMP 4
s_lshl_b32 s41, s3, 12
s_add_u32 s41, s41, {F.CEX}
v_add_u32 v{T+2}, s41, v1
v_xor_b32 v{T+3}, 4096, v{T+2}
s_cmp_eq_u32 s37, 0
s_cbranch_scc1 X_noswap
""")
    for i in range(16):
        a(f"v_swap_b32 v{A0+i}, v{A1+i}")
    a("X_noswap:")
    for i in range(4):
        a(f"ds_write_b128 v{T+2}, {vr(A1+4*i,4)} offset:{1024*i}")
    a(f"s_waitcnt lgkmcnt(0)\nds_write_b32 v{T}, v{T+1} offset:48")
    F.spin_lds(a, "X_a3", MA, 48, 1, T + 2)
    for i in range(4):
        a(f"ds_read_b128 {vr(A1+4*i,4)}, v{T+3} offset:{1024*i}")
    a(f"""
v_lshlrev_b32 v{T}, 6, v2
v_lshl_add_u32 v{T}, v3, 4, v{T}
s_lshl_b32 s41, s38, 12
s_lshl_b32 s44, s37, 11
s_add_u32 s41, s41, s44
s_add_u32 s41, s41, {YT_OFF}
s_waitcnt lgkmcnt(0)
""")
    for i in range(16):
        a(f"v_add_f32 v{A0+i}, v{A0+i}, v{A1+i}")
    for i in range(8):
        a(f"v_cvt_pk_bf16_f32 v{A0+i}, v{A0+2*i}, v{A0+2*i+1}")
    a("s_nop 0")
    for p in range(2):
        a(f"v_permlane32_swap_b32 v{A0+4*p}, v{A0+4*p+2}\nv_permlane32_swap_b32 v{A0+4*p+1}, v{A0+4*p+3}")
    for p in range(2):
        a(f"buffer_store_dwordx4 {vr(A0+4*p,4)}, v{T}, s[12:15], s41 offen offset:{32*p} sc1")
    a(f"""
v_mov_b32 v{MA}, {F.MISC}
s_waitcnt vmcnt(0)
;STAMP 5
s_mov_b64 exec, 1
ds_add_rtn_u32 v{T+1}, v{MA}, v{T+1} offset:4
s_mov_b64 exec, -1
s_waitcnt lgkmcnt(0)
v_readfirstlane_b32 s68, v{T+1}
s_cmp_lg_u32 s68, 3
s_cbranch_scc1 L_end
s_add_u32 s41, s61, {FY_OFF}
""")
    F.publish(a, TK, Z, "s41")
    F.spin_lds(a, "X_p1", MA, 0, 4, T + 2)
    a(f"""
v_lshrrev_b32 v{T}, 2, v0
v_and_b32 v{T+1}, 3, v0
v_mul_u32_u24 v{T}, 896, v{T}
v_lshl_add_u32 v{T}, v{T+1}, 4, v{T}
s_lshl_b32 s41, s34, 7
s_mov_b32 s44, {F.WO_B}
X_wo:
s_mov_b32 m0, s44
s_nop 0
buffer_load_dwordx4 v{T}, s[52:55], s41 offen lds
s_add_u32 m0, s44, {28672-64}
s_add_u32 s44, s44, 1024
buffer_load_dwordx4 v{T}, s[52:55], s41 offen offset:64 lds
s_add_u32 s41, s41, {16*896}
s_cmp_lt_u32 s44, {F.WO_B+28672}
s_cbranch_scc1 X_wo
s_waitcnt vmcnt(0)
s_endpgm
""")

def gate(a):
    TK, Z = 8, 10
    T = 12
    X, W = 24, 52
    XT = 80
    RD = 16
    a(f"""
L_gate:
s_lshl_b32 s36, s35, 6
v_lshrrev_b32 v{T}, 3, v0
v_add_u32 v{T}, s36, v{T}
v_mul_u32_u24 v4, 896, v{T}
v_lshrrev_b32 v{T+1}, 4, v0
v_xor_b32 v{T+2}, v{T+1}, v0
v_and_b32 v{T+2}, 7, v{T+2}
v_lshl_add_u32 v5, v{T+2}, 4, v4
v_xor_b32 v{T+2}, 4, v{T+2}
v_lshl_add_u32 v6, v{T+2}, 4, v4
v_add_u32 v6, {8*896-1024}, v6
s_lshl_b32 s37, s3, 14
s_mov_b32 m0, s37
s_lshl_b32 s38, s3, 7
s_waitcnt lgkmcnt(0)
s_cmp_eq_u32 s3, 7
s_cbranch_scc1 T_nodma
""")
    for i in range(4):
        a(f"""
buffer_load_dwordx4 v5, s[4:7], s38 offen lds
buffer_load_dwordx4 v6, s[4:7], s38 offen offset:1024 lds
""")
        if i < 3: a(f"s_add_u32 m0, m0, 2048\ns_add_u32 s38, s38, {16*896}")
    a(f"""
T_nodma:
v_and_b32 v{T+2}, 7, v0
v_lshlrev_b32 v{T+2}, 4, v{T+2}
s_mul_i32 s38, s3, {8*896}
v_add3_u32 v{T+3}, v4, v{T+2}, s38
""")
    for i in range(7):
        a(f"global_load_dwordx4 {vr(X+4*i,4)}, v{T+3}, s[4:5] offset:{128*i}")
        a(f"global_load_dwordx4 {vr(W+4*i,4)}, v{T+2}, s[28:29] offset:{128*i}")
    F.token_issue(a, TK, Z)
    a(f"""
v_bfe_u32 v{T+2}, v0, 2, 2
v_lshl_add_u32 v{T+2}, v{T+1}, 4, v{T+2}
v_lshl_add_u32 v{T+2}, v{T+2}, 7, s37
v_lshrrev_b32 v{T+3}, 2, v0
v_xor_b32 v{T+3}, v{T+3}, v0
v_and_b32 v{T+3}, 2, v{T+3}
v_lshl_add_u32 v{T+2}, v{T+3}, 3, v{T+2}
v_and_b32 v{T+3}, 1, v0
v_lshl_add_u32 v{RD}, v{T+3}, 3, v{T+2}
v_xor_b32 v{RD+1}, 32, v{RD}
v_xor_b32 v{RD+2}, 64, v{RD}
v_xor_b32 v{RD+3}, 96, v{RD}
v_and_b32 v{T+2}, 15, v0
v_mul_u32_u24 v{T+2}, 144, v{T+2}
v_lshl_add_u32 v{T+2}, v{T+1}, 5, v{T+2}
v_add_u32 v20, s37, v{T+2}
v_lshrrev_b32 v{T+2}, 3, v0
v_and_b32 v{T+3}, 7, v0
v_lshlrev_b32 v{T+3}, 4, v{T+3}
v_lshl_add_u32 v22, v{T+2}, 12, v{T+3}
v_mul_u32_u24 v{T+2}, 144, v{T+2}
v_add3_u32 v21, v{T+2}, v{T+3}, s37
s_lshl_b32 s38, s3, 18
s_lshl_b32 s39, s35, 7
s_add_u32 s38, s38, s39
s_add_u32 s38, s38, {XT_OFF}
s_cmp_eq_u32 s3, 7
s_cbranch_scc1 T_g
s_waitcnt vmcnt(15)
""")
    for c in range(4):
        for t in range(4):
            a(f"ds_read_b64_tr_b16 {vr(XT+8*c+2*t,2)}, v{RD+(t^c)} offset:{512*t}")
        if c == 2: a("s_waitcnt lgkmcnt(4)")
    a("s_waitcnt lgkmcnt(0)")
    for c in range(4):
        for i in range(2):
            a(f"ds_write_b128 v20, {vr(XT+8*c+4*i,4)} offset:{16*144*c+16*i}")
    for i in range(8):
        a(f"ds_read_b128 {vr(XT+4*i,4)}, v21 offset:{8*144*i}")
        if i == 5: a("s_waitcnt lgkmcnt(6)")
    for i in range(8):
        a(f"s_waitcnt lgkmcnt({7-i})")
        a(f"buffer_store_dwordx4 {vr(XT+4*i,4)}, v22, s[12:15], s38 offen sc1")
        if i < 7: a("s_add_u32 s38, s38, 32768")
    a("T_g:\nv_mov_b32 v23, 0\ns_waitcnt vmcnt(8)\ns_cmp_lg_u32 s3, 7\ns_cbranch_scc1 T_g2\ns_waitcnt vmcnt(0)\nT_g2:")
    for i in range(28):
        a(f"v_dot2c_f32_bf16 v23, v{X+i}, v{W+i}")
    a(f"""
s_nop 2
v_add_f32_dpp v23, v23, v23 quad_perm:[1,0,3,2] row_mask:0xf bank_mask:0xf
s_nop 1
v_add_f32_dpp v23, v23, v23 quad_perm:[2,3,0,1] row_mask:0xf bank_mask:0xf
s_nop 1
v_add_f32_dpp v23, v23, v23 row_half_mirror row_mask:0xf bank_mask:0xf
v_mul_f32 v23, {hex(f2u(-LOG2E))}, v23
v_exp_f32 v23, v23
v_lshlrev_b32 v{T}, 2, v{T}
v_add_f32 v23, 1.0, v23
v_rcp_f32 v23, v23
s_lshl_b32 s36, s3, 5
s_add_u32 s36, s36, {G_OFF}
s_mov_b32 exec_lo, 0x01010101
s_mov_b32 exec_hi, 0x01010101
buffer_store_dword v23, v{T}, s[12:15], s36 offen sc1
s_mov_b64 exec, -1
""")
    F.token_finish(a, "T_tok", TK, Z)
    a(f"""
s_waitcnt vmcnt(0)
;STAMP 0
s_barrier
s_mov_b32 s51, 0
s_cmp_lt_u32 s3, 4
s_cbranch_scc1 L_attn
s_cmp_lg_u32 s3, 4
s_cbranch_scc1 L_end
s_add_u32 s41, s61, {FQ_OFF}
""")
    F.publish(a, TK, Z, "s41")
    a("s_endpgm")
```

```python
import sys
from asmlib import *
from layout import *

NAME = "gated_mix__mha_block__ssm_conv_s4d__prompt"
def header():
    ref = open(f"cdna_kernels/{NAME}.s.ref").read().split("\n")
    return "\n".join(l for l in ref if l.startswith(";") and "@launch" not in l and "Override launch" not in l and "grid=ceil" not in l) + "\n"
import os, re
STAMP = os.environ.get("STAMP")
STAMP_OFF = 15 << 20
def instrument(t, name, kidx):
    entry = f"""{name}:
    s_memrealtime s[70:71]
    s_memtime s[72:73]
    v_lshrrev_b32 v1, 6, v0
    s_nop 0
    v_readfirstlane_b32 s87, v1
    s_waitcnt lgkmcnt(0)
    s_mov_b32 s71, s72
""" + "".join(f"    s_mov_b32 s{i}, 0\n" for i in range(74, 86))
    t = t.replace(f"{name}:\n", entry)
    if STAMP == "2": t = re.sub(r"^\s*;STAMP ([5-9]|1\d).*\n", "", t, flags=re.M)
    else: t = re.sub(r"^\s*;STAMPI.*\n", "", t, flags=re.M)
    t = re.sub(r"^\s*;STAMPV (\d+) (\w+).*\n", lambda m: f"    s_add_u32 s{74+int(m.group(1))}, {m.group(2)}, s71\n", t, flags=re.M)
    def st(m):
        i = int(m.group(1))
        return f"    s_memtime s[88:89]\n    s_waitcnt lgkmcnt(0)\n    s_mov_b32 s{74+i}, s88\n"
    t = re.sub(r"^\s*;STAMP (\d+).*\n", st, t, flags=re.M)
    t = re.sub(r"^\s*;STAMPI.*\n", "    s_memtime s[88:89]\n" + "".join(f"    s_mov_b32 s{i}, s{i+1}\n" for i in range(79, 85)) + "    s_waitcnt lgkmcnt(0)\n    s_mov_b32 s85, s88\n", t, flags=re.M)
    fin = f"""    s_waitcnt vmcnt(0) lgkmcnt(0)
    s_memrealtime s[72:73]
    s_memtime s[88:89]
    s_load_dwordx2 s[90:91], s[0:1], 104
    s_waitcnt lgkmcnt(0)
    s_mov_b32 s73, s88
    s_lshl_b32 s86, s2, 4
    s_add_u32 s86, s86, s87
    s_add_u32 s86, s86, {kidx*264*16}
    s_lshl_b32 s86, s86, 6
    s_add_u32 s86, s86, {STAMP_OFF}
    s_mov_b64 exec, 1
    v_mov_b32 v0, s86
""" + "".join(f"    v_mov_b32 v{4+i}, s{70+i}\n" for i in range(16)) + "".join(f"    global_store_dwordx4 v0, v[{4+4*i}:{7+4*i}], s[90:91] offset:{16*i}\n" for i in range(4)) + "    s_endpgm\n"
    lab = f"{name}_stamp_end"
    t = t.replace("    s_endpgm\n", f"    s_branch {lab}\n") + f"{lab}:\n" + fin
    return t
def build(kernels):
    h = header()
    for name, grid, block, lds, _, _ in kernels:
        h += f"; @launch kernel={name} grid=({grid},1,1) block=({block},1,1) lds={lds}\n"
    h += '.amdgcn_target "amdgcn-amd-amdhsa--gfx950"\n.text\n'
    body = ""
    for name, grid, block, lds, fn, vg in kernels:
        a = Asm()
        a(f".globl {name}\n.type {name},@function")
        fn(a)
        t = a.text()
        t = instrument(t, name, len(body.split(".globl")) - 1) if STAMP else re.sub(r"^\s*;STAMP.*\n", "", t, flags=re.M)
        check_hazards(t)
        body += t
    tail = '.section .rodata,"a"\n'
    for name, grid, block, lds, fn, vg in kernels:
        tail += kd(name, vg)
    return h + body + tail
if __name__ == "__main__":
    ks = [("k1_kernel", 256, 768, k1.K1_LDS, k1.gen_k1, 104)]
    try:
        if os.environ.get("K2B"):
            import k2b as k2
            ks.append(("k2_kernel", 256, 256, k2.K2_LDS, k2.gen_k2, k2.K2_VGPR))
        else:
            import k2
            ks.append(("k2_kernel", 256, 768, k2.K2_LDS, k2.gen_k2, k2.K2_VGPR))
        import k3
        ks.append(("k3_kernel", k3.K3_GRID, k3.K3_BLOCK, k3.K3_LDS, k3.gen_k3, k3.K3_VGPR))
    except ImportError:
        pass
    out = sys.argv[1] if len(sys.argv) > 1 else f"cdna_kernels/{NAME}.s"
    open(out, "w").write(build(ks))
```

```python
from asmlib import *
from layout import *

CV_BASE = 65536
CV_CH = 24320
CV_XP = 16640
CV_EX = 114688
K2_LDS = CV_EX + 16384
K2_VGPR = 112
import os
ROT = int(os.environ.get("ROT", "1"))
NOCONV = int(os.environ.get("NOCONV", "0"))
NWG = int(os.environ.get("NWG", "256"))
VAR = os.environ.get("VAR", "")
CPRIO = int(os.environ.get("CPRIO", "3"))

def gen_k2(a):
    a(f"""
.p2align 8
k2_kernel:
s_cmp_ge_u32 s2, {NWG}
s_cbranch_scc1 K2_end
s_load_dwordx2 s[4:5], s[0:1], 104
s_load_dwordx2 s[8:9], s[0:1], 104
v_lshrrev_b32 v1, 6, v0
v_and_b32 v0, 63, v0
v_readfirstlane_b32 s3, v1
s_mov_b32 s6, {64*QKV_T}
s_mov_b32 s7, 0x20000
s_mov_b32 s10, {WS_BYTES}
s_mov_b32 s11, 0x20000
v_lshlrev_b32 v1, 4, v0
v_and_b32 v2, 31, v0
v_lshrrev_b32 v3, 5, v0
s_cmp_ge_u32 s3, 8
s_cbranch_scc1 K2_conv
""")
    attn(a)
    conv(a)
    a("K2_end:\ns_endpgm")

def attn(a):
    KA, VA = 4, 8
    T = 12
    Q = 16
    KF = 24
    VF = 32
    P = 40
    O = 48
    S = [64, 80]
    NM = 96
    a(f"""
s_and_b32 s12, s2, 7
s_bfe_u32 s13, s2, 0x10003
s_lshl1_add_u32 s12, s12, s13
s_mul_i32 s12, s12, 7
s_lshr_b32 s13, s2, 4
s_and_b32 s14, s3, 3
s_lshl2_add_u32 s13, s13, s14
s_lshr_b32 s15, s3, 2
s_lshr_b32 s16, s3, 1
s_mul_i32 s16, s16, {QKV_T}
s_and_b32 s18, s3, 1
s_mul_i32 s19, s18, 112
s_add_u32 s19, s19, s12
s_add_u32 s19, s19, 112
s_lshl_b32 s19, s19, 8
s_add_u32 s16, s16, s19
s_add_u32 s32, s16, {64*QKV_T}
s_lshr_b32 s33, s2, 4
s_mul_i32 s33, s33, {4*QKV_T*ROT}
s_add_u32 s16, s16, s33
s_mov_b32 s33, s16
s_lshl_b32 s17, s3, 11
s_mov_b32 m0, s17
s_waitcnt lgkmcnt(0)
""")
    def dma(slot, setm0=True):
        if setm0:
            a(f"s_add_u32 m0, s17, {slot*16384}\ns_nop 0")
        a(f"""
buffer_load_dwordx4 v1, s[4:7], s16 offen lds
s_mov_b32 exec_hi, 0xffff
buffer_load_dwordx4 v1, s[4:7], s16 offen offset:1024 lds
s_mov_b32 exec_hi, -1
s_add_u32 s16, s16, {4*QKV_T}
s_sub_u32 s34, s16, {64*QKV_T}
s_cmp_ge_u32 s16, s32
s_cselect_b32 s16, s34, s16
s_cmp_eq_u32 s16, s33
s_cselect_b32 s16, 0x70000000, s16
""")
    dma(0, False)
    a(f"v_lshlrev_b32 v{T}, 3, v2")
    for u in range(2):
        for t in range(2):
            r = KA + 2*u + t
            a(f"""
v_lshl_add_u32 v{T+1}, v3, 1, {4*u+t}
v_add_u32 v{T+2}, s12, v{T+1}
v_and_b32 v{T+2}, 7, v{T+2}
v_lshlrev_b32 v{T+2}, 5, v{T+2}
v_xor_b32 v{T+2}, v{T+2}, v{T}
v_lshl_add_u32 v{r}, v{T+1}, 8, v{T+2}
""")
    a(f"""
s_mul_i32 s20, s13, {QKV_T}
s_lshl_b32 s21, s12, 8
s_add_u32 s20, s20, s21
""")
    for i in range(4):
        a(f"buffer_load_dwordx2 {vr(Q+2*i,2)}, v{KA+i}, s[4:7], s20 offen")
    dma(1)
    a(f"""
; pad rows: lane -> slot l/16, chunk l%16
v_lshrrev_b32 v{T}, 4, v0
v_and_b32 v{T+1}, 15, v0
v_lshlrev_b32 v{T}, 14, v{T}
v_lshl_add_u32 v{T}, v{T+1}, 4, v{T}
v_add_u32 v{T}, s17, v{T}
s_mul_i32 s18, s18, 0x3f80
v_mov_b32 v{KF}, s18
v_mov_b32 v{KF+1}, 0
v_mov_b32 v{KF+2}, s18
v_mov_b32 v{KF+3}, 0
ds_write_b128 v{T}, {vr(KF,4)} offset:1792
v_bfe_u32 v{T}, v0, 4, 1
v_and_b32 v{T+1}, 3, v0
v_lshl_add_u32 v{T}, v{T}, 2, v{T+1}
v_bfe_u32 v{T+1}, v0, 2, 2
v_lshl_add_u32 v{T+1}, v3, 2, v{T+1}
v_lshlrev_b32 v{T+1}, 3, v{T+1}
v_add_u32 v{T+2}, s12, v{T}
v_and_b32 v{T+2}, 7, v{T+2}
v_lshlrev_b32 v{T+2}, 5, v{T+2}
v_xor_b32 v{T+1}, v{T+1}, v{T+2}
v_lshl_add_u32 v{T}, v{T}, 8, v{T+1}
s_lshl_b32 s21, s15, 13
s_add_u32 s22, s21, 2048
v_add_u32 v{VA}, s22, v{T}
v_xor_b32 v{VA+1}, 64, v{VA}
v_xor_b32 v{VA+2}, 128, v{VA}
v_xor_b32 v{VA+3}, 192, v{VA}
""")
    for i in range(4):
        a(f"v_add_u32 v{KA+i}, s21, v{KA+i}")
    for i in range(16):
        a(f"v_mov_b32 v{O+i}, 0")
    for i in range(4):
        a(f"v_mov_b32 v{P+4+i}, 0\nv_mov_b32 v{VF+4+i}, 0")
    def toff(t):
        return ((t // 2) % 4) * 16384 + (t % 2) * 4096
    def rdK(t):
        for i in range(4 if "nords" not in VAR else 0):
            a(f"ds_read_b64 {vr(KF+2*i,2)}, v{KA+i} offset:{toff(t)}")
    def rdV(t, u):
        for i in range(2 if "nords" not in VAR else 0):
            a(f"ds_read_b64_tr_b16 {vr(VF+4*u+2*i,2)}, v{VA+2*u+i} offset:{toff(t)}")
    def qk(Sx, u, c0="0"):
        c = c0 if u == 0 else vr(Sx, 16)
        a(f"v_mfma_f32_32x32x16_bf16 {vr(Sx,16)}, {vr(KF+4*u,4)}, {vr(Q+4*u,4)}, {c}")
    def pv(u):
        a(f"v_mfma_f32_32x32x16_bf16 {vr(O,16)}, {vr(VF+4*u,4)}, {vr(P+4*u,4)}, {vr(O,16)}")
    a(f"""
;STAMP 0
s_waitcnt vmcnt(2) lgkmcnt(0)
;STAMP 1
s_barrier
;STAMP 2
""")
    dma(2)
    rdK(0)
    a(f"""
s_mov_b32 exec_lo, 0
v_mov_b32 v{Q+6}, 0
v_mov_b32 v{Q+7}, 0
s_mov_b32 exec_lo, -1
s_mov_b32 s23, 0
s_waitcnt lgkmcnt(0)
""")
    qk(S[0], 0); qk(S[0], 1)
    rdK(1); rdV(0, 0)
    a("s_nop 5")
    a(".p2align 3\nK2_a_loop:")
    for k in range(8):
        Sc, Sn = S[k % 2], S[(k + 1) % 2]
        def e(i): a(f"v_exp_f32 v{Sc+i}, v{Sc+i}")
        def c(i): a(f"v_cvt_pk_bf16_f32 v{P+i}, v{Sc+2*i}, v{Sc+2*i+1}")
        e(0); e(1); a("s_waitcnt lgkmcnt(6)"); pv(1); rdV(k, 1); e(2); e(3); c(0); c(1)
        e(4); e(5); a("s_waitcnt lgkmcnt(2)"); qk(Sn, 0); e(6); e(7); c(2); c(3)
        e(8); e(9); qk(Sn, 1); e(10); e(11); c(4); c(5)
        if k % 2 == 0:
            if "nobar" not in VAR: a("s_waitcnt vmcnt(2)\ns_barrier")
            if "nodma" not in VAR: dma((k // 2 + 3) % 4)
        rdK(k + 2)
        e(12); e(13); pv(0); rdV(k + 1, 0); e(14); e(15); c(6); c(7)
    a(f"""
s_add_u32 s23, s23, 1
s_cmp_lt_u32 s23, 4
s_cbranch_scc1 K2_a_loop
s_waitcnt lgkmcnt(0)
;STAMP 3
""")
    pv(1)
    a(f"""
s_lshl_b32 s21, s14, 12
v_add_u32 v{T}, s21, v1
s_cmp_eq_u32 s15, 0
s_cbranch_scc1 K2_a_fin
s_nop 7
""")
    for i in range(4):
        a(f"ds_write_b128 v{T}, {vr(O+4*i,4)} offset:{1024*i}")
    a(f"""
s_waitcnt lgkmcnt(0)
s_barrier
s_endpgm
K2_a_fin:
s_barrier
""")
    for i in range(4):
        a(f"ds_read_b128 {vr(S[0]+4*i,4)}, v{T} offset:{1024*i}")
    a(f"""
s_mul_i32 s24, s13, {O_T}
s_lshl_b32 s25, s12, 8
s_add_u32 s24, s24, s25
s_add_u32 s24, s24, {O_OFF}
v_lshlrev_b32 v{T+1}, 3, v0
s_waitcnt lgkmcnt(0)
""")
    for i in range(16):
        a(f"v_add_f32 v{O+i}, v{O+i}, v{S[0]+i}")
    a(f"""
s_mov_b32 s26, 0x30800000
s_mov_b32 s27, 0x4e800000
s_mov_b32 exec_lo, 0
v_cmp_nge_f32 vcc, v{O+12}, s26
v_cmp_nle_f32 s[28:29], v{O+12}, s27
s_mov_b32 exec_lo, -1
s_or_b64 vcc, vcc, s[28:29]
s_cbranch_vccnz K2_a_slow
K2_a_store:
v_mov_b32 v{T+2}, v{O+12}
v_mov_b32 v{T+3}, v{O+12}
s_nop 1
v_permlane32_swap_b32 v{T+2}, v{T+3}
s_nop 0
v_rcp_f32 v{T+2}, v{T+3}
s_nop 0
""")
    for i in range(8):
        a(f"v_pk_mul_f32 {vr(O+2*i,2)}, {vr(O+2*i,2)}, {vr(T+2,2)} op_sel_hi:[1,0]")
    for i in range(8):
        a(f"v_cvt_pk_bf16_f32 v{O+i}, v{O+2*i}, v{O+2*i+1}")
    for q in range(4):
        if q == 3: a("s_mov_b32 exec_hi, 0")
        a(f"buffer_store_dwordx2 {vr(O+2*q,2)}, v{T+1}, s[8:11], s24 offen offset:{512*q}")
    a("s_endpgm")
    a(f"""
K2_a_slow:
s_add_u32 s21, s21, 49152
s_add_u32 s30, s12, 112
s_lshl_b32 s30, s30, 8
s_mov_b32 s31, 0
""")
    for i in range(8):
        a(f"v_add_u32 v{KA+i}, s21, v{KA+i}")
    for i in range(16):
        a(f"v_mov_b32 v{O+i}, 0\nv_mov_b32 v{NM+i}, 0")
    a(f"""
v_mov_b32 v{T+2}, 0xff800000
K2_s_pass:
s_mov_b32 s23, 0
s_mov_b32 s16, s30
K2_s_loop:
s_mov_b32 m0, s21
s_add_u32 s19, s16, {112*256 - 2048}
buffer_load_dwordx4 v1, s[4:7], s16 offen lds
buffer_load_dwordx4 v1, s[4:7], s19 offen offset:2048 lds
s_mov_b32 exec_hi, 0xffff
buffer_load_dwordx4 v1, s[4:7], s16 offen offset:1024 lds
buffer_load_dwordx4 v1, s[4:7], s19 offen offset:3072 lds
s_mov_b32 exec_hi, -1
s_add_u32 s16, s16, {QKV_T}
s_waitcnt vmcnt(0)
""")
    rdK(0); rdV(0, 0); rdV(0, 1)
    a("s_waitcnt lgkmcnt(0)")
    qk(S[0], 0, vr(NM, 16)); qk(S[0], 1)
    a("s_nop 11\ns_cmp_eq_u32 s31, 0\ns_cbranch_scc0 K2_s_exp")
    for i in range(8):
        a(f"v_max3_f32 v{T+2}, v{T+2}, v{S[0]+2*i}, v{S[0]+2*i+1}")
    a("s_branch K2_s_next\nK2_s_exp:")
    for i in range(16):
        a(f"v_exp_f32 v{S[0]+i}, v{S[0]+i}")
    for i in range(8):
        a(f"v_cvt_pk_bf16_f32 v{P+i}, v{S[0]+2*i}, v{S[0]+2*i+1}")
    a("s_nop 1")
    pv(0); pv(1)
    a(f"""
K2_s_next:
s_add_u32 s23, s23, 1
s_cmp_lt_u32 s23, 64
s_cbranch_scc1 K2_s_loop
s_nop 12
s_cmp_eq_u32 s31, 1
s_cbranch_scc1 K2_a_store
s_mov_b32 s31, 1
v_mov_b32 v{T+3}, v{T+2}
s_nop 1
v_permlane32_swap_b32 v{T+2}, v{T+3}
s_nop 1
v_max_f32 v{T+2}, v{T+2}, v{T+3}
""")
    for i in range(16):
        a(f"v_sub_f32 v{NM+i}, 0, v{T+2}")
    a("s_branch K2_s_pass")

def conv(a):
    FA, GA, T = 4, 5, 6
    FR = 16
    A0, A1 = 48, 64
    a(f"""
K2_conv:
s_cmp_ge_u32 s2, {0 if NOCONV else 224}
s_cbranch_scc1 K2_end
s_setprio {CPRIO}
s_sub_u32 s3, s3, 8
s_lshr_b32 s12, s3, 1
s_and_b32 s13, s3, 1
s_lshl1_add_u32 s14, s2, s12
s_mul_i32 s15, s12, {CV_CH}
s_add_u32 s15, s15, {CV_BASE}
s_mul_i32 s16, s14, {KR_STRIDE}
s_lshl2_add_u32 s16, s13, s16
s_add_u32 s16, s16, {KR_OFF}
s_mul_i32 s17, s13, 8320
s_add_u32 s17, s17, s15
s_mov_b32 m0, s17
s_waitcnt lgkmcnt(0)
""")
    for q in range(2):
        for i in range(4):
            a(f"buffer_load_dwordx4 v1, s[8:11], s16 offen offset:{1024*i} lds")
        if q == 0:
            a("s_add_u32 m0, s17, 4160\ns_add_u32 s16, s16, 2")
    a(f"""
s_lshl_b32 s18, s13, 7
v_add_u32 v{T}, s18, v0
s_lshl_b32 s19, s14, 12
s_add_u32 s19, s19, {XT_OFF}
s_lshl_b32 s18, s13, 11
s_add_u32 s18, s18, s15
s_add_u32 m0, s18, {CV_XP + 31*80}
""")
    for i in range(3):
        a(f"""
v_mul_u32_u24 v{T+1}, 205, v{T}
v_lshrrev_b32 v{T+1}, 10, v{T+1}
v_sub_u32 v{T+1}, v{T}, v{T+1}
v_lshlrev_b32 v{T+1}, 4, v{T+1}
buffer_load_dwordx4 v{T+1}, s[8:11], s19 offen lds
""")
        if i < 2:
            a(f"v_add_u32 v{T}, 64, v{T}\ns_add_u32 m0, m0, 1024")
    for i in range(32):
        a(f"v_mov_b32 v{A0+i}, 0")
    a(f"""
v_add_u32 v{T}, s15, v1
ds_write_b128 v{T}, {vr(A0,4)} offset:{CV_XP}
ds_write_b128 v{T}, {vr(A0,4)} offset:{CV_XP+1024}
ds_write_b128 v{T}, {vr(A0,4)} offset:{CV_XP+2480-1024}
v_add_u32 v{T}, s17, v1
s_mov_b64 exec, 15
ds_write_b128 v{T}, {vr(A0,4)} offset:4096
ds_write_b128 v{T}, {vr(A0,4)} offset:{4160+4096}
s_mov_b64 exec, -1
v_sub_u32 v{T}, 31, v2
v_and_b32 v{T+1}, 3, v{T}
v_mul_u32_u24 v{T+2}, 4158, v{T+1}
v_lshl_add_u32 v{T}, v{T}, 1, v{T+2}
v_lshl_add_u32 v{T}, v3, 4, v{T}
s_lshl_b32 s18, s13, 10
s_add_u32 s18, s18, s15
v_add_u32 v{FA}, s18, v{T}
v_mul_u32_u24 v{T}, 80, v2
v_lshl_add_u32 v{T}, v3, 4, v{T}
s_mul_i32 s18, s13, 1280
s_add_u32 s18, s18, s15
s_add_u32 s18, s18, {CV_XP}
v_add_u32 v{GA}, s18, v{T}
s_mov_b32 s20, 0
;STAMP 0
s_waitcnt vmcnt(0) lgkmcnt(0)
;STAMP 1
K2_c_loop:
s_barrier
""")
    for s in range(2):
        F = FR + 16*s
        a(f"""
ds_read_b64 {vr(F+4,2)}, v{FA} offset:{32*s+2048}
ds_read_b64 {vr(F+6,2)}, v{FA} offset:{32*s+2048+8}
ds_read_b128 {vr(F+8,4)}, v{GA} offset:{32*s}
ds_read_b128 {vr(F+12,4)}, v{GA} offset:{32*s+2560}
ds_read_b64 {vr(F,2)}, v{FA} offset:{32*s}
ds_read_b64 {vr(F+2,2)}, v{FA} offset:{32*s+8}
""")
    a(f"v_add_u32 v{FA}, 64, v{FA}\nv_add_u32 v{GA}, 80, v{GA}")
    for s in range(2):
        F = FR + 16*s
        a(f"""
s_waitcnt lgkmcnt({6-6*s})
v_mfma_f32_32x32x16_bf16 {vr(A0,16)}, {vr(F+4,4)}, {vr(F+8,4)}, {vr(A0,16)}
v_mfma_f32_32x32x16_bf16 {vr(A1,16)}, {vr(F+4,4)}, {vr(F+12,4)}, {vr(A1,16)}
v_mfma_f32_32x32x16_bf16 {vr(A1,16)}, {vr(F,4)}, {vr(F+8,4)}, {vr(A1,16)}
""")
    a(f"""
s_add_u32 s20, s20, 1
s_cmp_lt_u32 s20, 16
s_cbranch_scc1 K2_c_loop
s_lshl_b32 s18, s3, 12
s_add_u32 s18, s18, {CV_EX}
v_add_u32 v{T}, s18, v1
v_xor_b32 v{T+1}, 4096, v{T}
s_nop 4
s_cmp_eq_u32 s13, 0
s_cbranch_scc1 K2_c_noswap
""")
    for i in range(16):
        a(f"v_swap_b32 v{A0+i}, v{A1+i}")
    a("K2_c_noswap:")
    for i in range(4):
        a(f"ds_write_b128 v{T}, {vr(A1+4*i,4)} offset:{1024*i}")
    a("s_waitcnt lgkmcnt(0)\ns_barrier")
    for i in range(4):
        a(f"ds_read_b128 {vr(A1+4*i,4)}, v{T+1} offset:{1024*i}")
    a(f"""
v_lshlrev_b32 v{T}, 6, v2
v_lshl_add_u32 v{T}, v3, 4, v{T}
s_lshl_b32 s18, s14, 12
s_lshl_b32 s19, s13, 11
s_add_u32 s18, s18, s19
s_add_u32 s18, s18, {YT_OFF}
s_waitcnt lgkmcnt(0)
""")
    for i in range(16):
        a(f"v_add_f32 v{A0+i}, v{A0+i}, v{A1+i}")
    for i in range(8):
        a(f"v_cvt_pk_bf16_f32 v{A0+i}, v{A0+2*i}, v{A0+2*i+1}")
    a("s_nop 1")
    for p in range(2):
        a(f"v_permlane32_swap_b32 v{A0+4*p}, v{A0+4*p+2}\nv_permlane32_swap_b32 v{A0+4*p+1}, v{A0+4*p+3}")
    for p in range(2):
        a(f"buffer_store_dwordx4 {vr(A0+4*p,4)}, v{T}, s[8:11], s18 offen offset:{32*p}")
```

```python
from asmlib import *
from layout import *
import os
NWG = int(os.environ.get("NWG", "256"))
VAR = os.environ.get("VAR", "")
K2_LDS = 65536
K2_VGPR = 192

def gen_k2(a):
    a(f"""
.p2align 8
k2_kernel:
s_cmp_ge_u32 s2, {NWG}
s_cbranch_scc1 K2_end
s_load_dwordx2 s[4:5], s[0:1], 104
s_load_dwordx2 s[8:9], s[0:1], 104
v_lshrrev_b32 v1, 6, v0
v_and_b32 v0, 63, v0
v_readfirstlane_b32 s3, v1
s_mov_b32 s6, {64*QKV_T}
s_mov_b32 s7, 0x20000
s_mov_b32 s10, {WS_BYTES}
s_mov_b32 s11, 0x20000
v_lshlrev_b32 v1, 4, v0
v_and_b32 v2, 31, v0
v_lshrrev_b32 v3, 5, v0
""")
    attn(a)
    a("K2_end:\ns_endpgm")

def attn(a):
    KA, VA = 4, 8
    T = 12
    KF = 16
    VF = 24
    P = 32
    Q = 40
    S = [72, 88]
    O = 104
    NM = 168
    a(f"""
s_and_b32 s12, s2, 7
s_bfe_u32 s13, s2, 0x10003
s_lshl1_add_u32 s12, s12, s13
s_mul_i32 s12, s12, 7
s_lshr_b32 s13, s2, 4
; DMA source: tile (16w + (i + qb) % 16)
s_mul_i32 s16, s3, {16*QKV_T}
s_add_u32 s19, s12, 112
s_lshl_b32 s19, s19, 8
s_add_u32 s16, s16, s19
s_add_u32 s32, s16, {16*QKV_T}
s_mul_i32 s33, s13, {QKV_T}
s_add_u32 s16, s16, s33
s_mov_b32 s33, s16
s_lshl_b32 s17, s3, 14
s_waitcnt lgkmcnt(0)
""")
    def dma(slot):
        a(f"""
s_add_u32 m0, s17, {slot*4096}
s_add_u32 s19, s16, {112*256 - 2048}
buffer_load_dwordx4 v1, s[4:7], s16 offen lds
buffer_load_dwordx4 v1, s[4:7], s19 offen offset:2048 lds
s_mov_b32 exec_hi, 0xffff
buffer_load_dwordx4 v1, s[4:7], s16 offen offset:1024 lds
buffer_load_dwordx4 v1, s[4:7], s19 offen offset:3072 lds
s_mov_b32 exec_hi, -1
s_add_u32 s16, s16, {QKV_T}
s_sub_u32 s34, s16, {16*QKV_T}
s_cmp_ge_u32 s16, s32
s_cselect_b32 s16, s34, s16
s_cmp_eq_u32 s16, s33
s_cselect_b32 s16, 0x70000000, s16
""")
    dma(0)
    a(f"v_lshlrev_b32 v{T}, 3, v2")
    for u in range(2):
        for t in range(2):
            r = KA + 2*u + t
            a(f"""
v_lshl_add_u32 v{T+1}, v3, 1, {4*u+t}
v_add_u32 v{T+2}, s12, v{T+1}
v_and_b32 v{T+2}, 7, v{T+2}
v_lshlrev_b32 v{T+2}, 5, v{T+2}
v_xor_b32 v{T+2}, v{T+2}, v{T}
v_lshl_add_u32 v{r}, v{T+1}, 8, v{T+2}
""")
    a(f"""
s_mul_i32 s20, s13, {4*QKV_T}
s_lshl_b32 s21, s12, 8
s_add_u32 s20, s20, s21
""")
    for q in range(4):
        for i in range(4):
            a(f"buffer_load_dwordx2 {vr(Q+8*q+2*i,2)}, v{KA+i}, s[4:7], s20 offen")
        if q < 3: a(f"s_add_u32 s20, s20, {QKV_T}")
    dma(1); dma(2); dma(3)
    a(f"""
; pad rows: lane -> slot l/16, chunk l%16
v_lshrrev_b32 v{T}, 4, v0
v_and_b32 v{T+1}, 15, v0
v_lshlrev_b32 v{T}, 12, v{T}
v_lshl_add_u32 v{T}, v{T+1}, 4, v{T}
v_add_u32 v{T}, s17, v{T}
v_mov_b32 v{KF}, 0x3f80
v_mov_b32 v{KF+1}, 0
v_mov_b32 v{KF+2}, 0x3f80
v_mov_b32 v{KF+3}, 0
ds_write_b128 v{T}, {vr(KF,4)} offset:1792
ds_write_b128 v{T}, {vr(KF,4)} offset:{2048+1792}
v_bfe_u32 v{T}, v0, 4, 1
v_and_b32 v{T+1}, 3, v0
v_lshl_add_u32 v{T}, v{T}, 2, v{T+1}
v_bfe_u32 v{T+1}, v0, 2, 2
v_lshl_add_u32 v{T+1}, v3, 2, v{T+1}
v_lshlrev_b32 v{T+1}, 3, v{T+1}
v_add_u32 v{T+2}, s12, v{T}
v_and_b32 v{T+2}, 7, v{T+2}
v_lshlrev_b32 v{T+2}, 5, v{T+2}
v_xor_b32 v{T+1}, v{T+1}, v{T+2}
v_lshl_add_u32 v{T}, v{T}, 8, v{T+1}
s_add_u32 s22, s17, 2048
v_add_u32 v{VA}, s22, v{T}
v_xor_b32 v{VA+1}, 64, v{VA}
v_xor_b32 v{VA+2}, 128, v{VA}
v_xor_b32 v{VA+3}, 192, v{VA}
""")
    for i in range(4):
        a(f"v_add_u32 v{KA+i}, s17, v{KA+i}")
    for i in range(64):
        a(f"v_mov_b32 v{O+i}, 0")
    for i in range(4):
        a(f"v_mov_b32 v{P+4+i}, 0\nv_mov_b32 v{VF+4+i}, 0")
    def rdK(t, u):
        for i in range(2):
            a(f"ds_read_b64 {vr(KF+4*u+2*i,2)}, v{KA+2*u+i} offset:{(t%4)*4096}")
    def rdV(t, u):
        for i in range(2):
            a(f"ds_read_b64_tr_b16 {vr(VF+4*u+2*i,2)}, v{VA+2*u+i} offset:{(t%4)*4096}")
    def qk(Sx, q, u, c0="0"):
        c = c0 if u == 0 else vr(Sx, 16)
        a(f"v_mfma_f32_32x32x16_bf16 {vr(Sx,16)}, {vr(KF+4*u,4)}, {vr(Q+8*q+4*u,4)}, {c}")
    def pv(q, u):
        a(f"v_mfma_f32_32x32x16_bf16 {vr(O+16*q,16)}, {vr(VF+4*u,4)}, {vr(P+4*u,4)}, {vr(O+16*q,16)}")
    a(f"""
;STAMP 0
s_waitcnt vmcnt(12) lgkmcnt(0)
;STAMP 1
""")
    rdK(0, 0); rdK(0, 1); rdV(0, 0)
    a("s_mov_b32 exec_lo, 0")
    for q in range(4):
        a(f"v_mov_b32 v{Q+8*q+6}, 0\nv_mov_b32 v{Q+8*q+7}, 0")
    a(f"""
s_mov_b32 exec_lo, -1
s_mov_b32 s23, 0
s_waitcnt lgkmcnt(0)
""")
    qk(S[0], 0, 0); qk(S[0], 0, 1)
    a("s_nop 11")
    a(";STAMP 2")
    a(".p2align 3\nK2_a_loop:")
    for t in range(4):
        for q in range(4):
            Sc, Sn = S[q % 2], S[(q + 1) % 2]
            def e(i): a(f"v_exp_f32 v{Sc+i}, v{Sc+i}")
            def c(i): a(f"v_cvt_pk_bf16_f32 v{P+i}, v{Sc+2*i}, v{Sc+2*i+1}")
            e(0); e(1)
            if q == 1: a("s_waitcnt lgkmcnt(0)")
            pv((q + 3) % 4, 1)
            if q == 0: rdV(t, 1)
            e(2)
            if q == 1 and "nodma" not in VAR: dma(t)
            e(3); c(0); c(1)
            e(4); e(5)
            if q == 3: a("s_waitcnt lgkmcnt(2)")
            qk(Sn, (q + 1) % 4, 0)
            if q == 2:
                a("s_waitcnt vmcnt(12)"); rdK(t + 1, 0)
            e(6); e(7); c(2); c(3)
            e(8); e(9)
            if q == 3: a("s_waitcnt lgkmcnt(0)")
            qk(Sn, (q + 1) % 4, 1)
            if q == 2: rdK(t + 1, 1)
            e(10); e(11); c(4); c(5)
            e(12); e(13)
            if q == 0: a("s_waitcnt lgkmcnt(2)")
            pv(q, 0)
            if q == 3: rdV(t + 1, 0)
            if q == 1: a("s_nop 0")
            e(14); e(15); c(6); c(7)
    a(f"""
s_add_u32 s23, s23, 1
s_cmp_lt_u32 s23, 4
s_cbranch_scc1 K2_a_loop
;STAMP 3
""")
    pv(3, 1)
    a(f"""
s_waitcnt vmcnt(0) lgkmcnt(0)
v_add_u32 v{T}, s17, v1
s_nop 8
""")
    for q in range(4):
        for i in range(4):
            a(f"ds_write_b128 v{T}, {vr(O+16*q+4*i,4)} offset:{4096*q+1024*i}")
    a(f"""
s_lshl_b32 s21, s3, 12
v_add_u32 v{T}, s21, v1
s_waitcnt lgkmcnt(0)
s_barrier
;STAMP 4
""")
    for w in range(4):
        for i in range(4):
            a(f"ds_read_b128 {vr(O+16*w+4*i,4)}, v{T} offset:{16384*w+1024*i}")
    a(f"""
s_lshl2_add_u32 s13, s13, s3
s_mul_i32 s24, s13, {O_T}
s_lshl_b32 s25, s12, 8
s_add_u32 s24, s24, s25
s_add_u32 s24, s24, {O_OFF}
v_lshlrev_b32 v{T+1}, 3, v0
s_waitcnt lgkmcnt(8)
""")
    for i in range(8):
        a(f"v_pk_add_f32 {vr(O+2*i,2)}, {vr(O+2*i,2)}, {vr(O+16+2*i,2)}")
    a("s_waitcnt lgkmcnt(0)")
    for i in range(8):
        a(f"v_pk_add_f32 {vr(O+32+2*i,2)}, {vr(O+32+2*i,2)}, {vr(O+48+2*i,2)}")
    for i in range(8):
        a(f"v_pk_add_f32 {vr(O+2*i,2)}, {vr(O+2*i,2)}, {vr(O+32+2*i,2)}")
    a(f"""
v_mov_b32 v{T+2}, v{O+12}
v_mov_b32 v{T+3}, v{O+12}
s_nop 1
v_permlane32_swap_b32 v{T+2}, v{T+3}
s_nop 0
v_rcp_f32 v{T+2}, v{T+3}
s_nop 0
""")
    for i in range(8):
        a(f"v_pk_mul_f32 {vr(O+2*i,2)}, {vr(O+2*i,2)}, {vr(T+2,2)} op_sel_hi:[1,0]")
    for i in range(8):
        a(f"v_cvt_pk_bf16_f32 v{O+i}, v{O+2*i}, v{O+2*i+1}")
    for q in range(4):
        if q == 3: a("s_mov_b32 exec_hi, 0")
        a(f"buffer_store_dwordx2 {vr(O+2*q,2)}, v{T+1}, s[8:11], s24 offen offset:{512*q}")
    a(";STAMP 5\ns_endpgm")
```

```python
QKV_OFF = 0
QKV_T = 168 * 512
XT_OFF = 6 << 20
G_OFF = 8 << 20
YT_OFF = 9 << 20
O_OFF = 11 << 20
O_T = 32768
FQ_OFF = 13 << 20
FY_OFF = FQ_OFF + 8 * 32768
FO_OFF = FY_OFF + 8 * 32768
KD_OFF = 14 << 20
WS_BYTES = 16 << 20
import math, struct
def f2u(x): return struct.unpack("<I", struct.pack("<f", x))[0]
LOG2E = math.log2(math.e)
QSCALE = LOG2E / math.sqrt(28.0)
```

```python
import sys, os, re
from asmlib import *
from layout import *
import gen as G
import fused
def build():
    h = G.header()
    h += f"; @launch grid=(256,1,1) block=(512,1,1) lds={fused.LDS_BYTES}\n"
    h += '.amdgcn_target "amdgcn-amd-amdhsa--gfx950"\n.text\n'
    a = Asm()
    a(f".globl {fused.NAME}\n.type {fused.NAME},@function")
    fused.gen(a)
    t = a.text()
    t = G.instrument(t, fused.NAME, 0) if G.STAMP else re.sub(r"^\s*;STAMP.*\n", "", t, flags=re.M)
    check_hazards(t)
    return h + t + '.section .rodata,"a"\n' + kd(fused.NAME, fused.VGPRS, extra="  .amdhsa_ieee_mode 0\n")
out = sys.argv[1] if len(sys.argv) > 1 else f"cdna_kernels/{G.NAME}.s"
open(out, "w").write(build())
```

```python
from asmlib import *
from layout import *
import os
NAME = "gated_mix__mha_block__ssm_conv_s4d__prompt_kernel"
SPIN = 400000
CH_AREA = 30720
TAB = 16; TABK = 109; CPY = 2688; KG_AREA = 8704; XP = 20096
YG = 49152; YG_SLOT = 2304
MISC = 61440
RING = 65536
WO_B = 65536; VR = 122880; VSLOT = 2368; VWAVE = 4 * VSLOT
LDS_BYTES = 163840
VGPRS = 256
SL = 272

def spin_global(a, lab, dst2, vaddr, soff, mask, cnt="s60"):
    lo, hi = mask & 0xffffffff, mask >> 32
    a(f"""
s_mov_b32 {cnt}, 0
s_mov_b32 exec_lo, {hex(lo)}
s_mov_b32 exec_hi, {hex(hi)}
{lab}:
buffer_load_dwordx2 {vr(dst2,2)}, v{vaddr}, s[12:15], {soff} offen sc1
s_add_u32 {cnt}, {cnt}, 1
s_cmp_gt_u32 {cnt}, {SPIN}
s_cbranch_scc1 L_end
s_waitcnt vmcnt(0)
v_cmp_ne_u64 vcc, {vr(dst2,2)}, s[62:63]
s_and_b64 exec, exec, vcc
s_cbranch_scc1 {lab}
s_mov_b64 exec, -1
""")

def spin_lds(a, lab, vaddr, off, val, tmp, cnt="s60"):
    a(f"""
s_mov_b32 {cnt}, 0
{lab}:
ds_read_b32 v{tmp}, v{vaddr} offset:{off}
s_add_u32 {cnt}, {cnt}, 1
s_cmp_gt_u32 {cnt}, {SPIN*8}
s_cbranch_scc1 L_end
s_waitcnt lgkmcnt(0)
v_cmp_ne_u32 vcc, {val}, v{tmp}
s_cbranch_vccnz {lab}
""")

def token_issue(a, t2, z):
    a(f"v_mov_b32 v{z}, 0\nglobal_load_dwordx2 {vr(t2,2)}, v{z}, s[48:49] sc1")

def token_finish(a, lab, t2, z):
    a(f"""
s_mov_b32 s60, 0
{lab}:
v_readfirstlane_b32 s62, v{t2}
v_readfirstlane_b32 s63, v{t2+1}
s_cmp_lg_u64 s[62:63], 0
s_cbranch_scc1 {lab}_ok
global_load_dwordx2 {vr(t2,2)}, v{z}, s[48:49] sc1
s_add_u32 s60, s60, 1
s_cmp_gt_u32 s60, {SPIN}
s_cbranch_scc1 L_end
s_waitcnt vmcnt(0)
s_branch {lab}
{lab}_ok:
""")

def publish8(a, t2, tmp, soff):
    a(f"""
v_lshlrev_b32 v{tmp}, 15, v0
s_mov_b64 exec, 0xff
buffer_store_dwordx2 {vr(t2,2)}, v{tmp}, s[12:15], {soff} offen sc1
s_mov_b64 exec, -1
""")

def get_role(a, lab, z, tmp):
    a(f"""
s_mov_b32 s60, 0
{lab}:
ds_read_b32 v{tmp}, v{z} offset:{MISC+8}
s_add_u32 s60, s60, 1
s_cmp_gt_u32 s60, {SPIN*8}
s_cbranch_scc1 L_end
s_waitcnt lgkmcnt(0)
v_readfirstlane_b32 s69, v{tmp}
s_cmp_eq_u32 s69, 0
s_cbranch_scc1 {lab}
s_sub_u32 s69, s69, 1
""")

def gen(a):
    a(f"""
.p2align 8
{NAME}:
s_cmp_ge_u32 s2, 256
s_cbranch_scc1 L_end
s_load_dwordx2 s[4:5], s[0:1], 0
s_load_dwordx2 s[8:9], s[0:1], 8
s_load_dwordx2 s[12:13], s[0:1], 104
s_load_dwordx16 s[16:31], s[0:1], 32
s_load_dwordx2 s[48:49], s[0:1], 96
s_load_dwordx2 s[52:53], s[0:1], 16
s_load_dwordx2 s[56:57], s[0:1], 88
s_memrealtime s[64:65]
v_lshrrev_b32 v1, 6, v0
v_and_b32 v0, 63, v0
v_readfirstlane_b32 s3, v1
s_mov_b32 s6, {2048*896}
s_mov_b32 s7, 0x20000
s_mov_b32 s10, {448*2688}
s_mov_b32 s11, 0x20000
s_mov_b32 s14, {WS_BYTES}
s_mov_b32 s15, 0x20000
s_mov_b32 s54, {448*896}
s_mov_b32 s55, 0x20000
s_mov_b32 s58, {2048*896}
s_mov_b32 s59, 0x20000
v_lshlrev_b32 v1, 4, v0
v_and_b32 v2, 31, v0
v_lshrrev_b32 v3, 5, v0
s_bfe_u32 s32, s2, 0x20003
s_and_b32 s34, s2, 4
s_add_u32 s34, s34, s32
s_lshr_b32 s33, s2, 5
s_and_b32 s35, s2, 3
s_lshl3_add_u32 s35, s35, s33
s_lshl_b32 s61, s34, 5
s_add_u32 s61, s61, s35
s_lshl_b32 s61, s61, 7
s_getreg_b32 s68, hwreg(HW_REG_XCC_ID, 0, 3)
s_cmp_eq_u32 s34, 7
s_cbranch_scc1 L_gate
s_cmp_ge_u32 s3, 4
s_cbranch_scc1 L_aux
""")
    gemm(a)
    attn(a)
    outproj(a)
    aux(a)
    gate(a)
    slow(a)
    a("L_end:\ns_endpgm\nL_code_end:")

def gemm(a):
    XA0, XA1, WA = 4, 5, 6
    XR, WR = 8, 12
    XC, WC = 14, 18
    T0, T1, T2 = 20, 21, 22
    FW, FP, FV, FI = 13, 19, 23, 20
    FA, FB = 24, 40
    ACC = 56
    a(f"""
s_setprio 2
v_lshrrev_b32 v{T0}, 3, v0
s_lshl_b32 s36, s35, 6
s_lshl_b32 s37, s3, 4
s_add_u32 s36, s36, s37
v_add_u32 v{T0}, s36, v{T0}
v_mul_u32_u24 v{T0}, 896, v{T0}
v_lshrrev_b32 v{T1}, 4, v0
v_xor_b32 v{T1}, v{T1}, v0
v_and_b32 v{T1}, 7, v{T1}
v_lshl_add_u32 v{XA0}, v{T1}, 4, v{T0}
v_xor_b32 v{T1}, 4, v{T1}
v_lshl_add_u32 v{XA1}, v{T1}, 4, v{T0}
v_add_u32 v{XA1}, {8*896 - 1024}, v{XA1}
v_lshrrev_b32 v{T0}, 2, v0
v_add_u32 v{T0}, s37, v{T0}
v_mul_u32_u24 v{T0}, 2688, v{T0}
v_and_b32 v{T1}, 3, v0
v_lshl_add_u32 v{WA}, v{T1}, 4, v{T0}
; first sigma = ((r>>2) + 2*(r&3)) % 7
s_lshl1_add_u32 s39, s32, s33
s_cmp_ge_u32 s39, 7
s_cselect_b32 s38, 7, 0
s_sub_u32 s39, s39, s38
s_mul_i32 s40, s34, 384
s_lshl_b32 s41, s3, 11
s_add_u32 s41, s41, {RING}
s_mov_b32 s38, s41
s_lshl_b32 s42, s3, 10
s_sub_u32 s42, {8192}, s42
s_mov_b32 s43, 0
s_lshl_b32 s46, s39, 7
s_mul_i32 s47, s39, {64*2688}
s_add_u32 s47, s47, s40
s_waitcnt lgkmcnt(0)
s_barrier
""")
    dma = [f"buffer_load_dwordx4 v{XA0}, s[4:7], s46 offen lds",
           f"buffer_load_dwordx4 v{XA1}, s[4:7], s46 offen offset:1024 lds"] + \
          [f"buffer_load_dwordx4 v{WA}, s[8:11], s47 offen offset:{64*ct} lds" for ct in range(6)]
    pre = ["s_mov_b32 m0, s41", None, "s_add_u32 m0, s41, s42"] + [f"s_add_u32 m0, m0, {4096-64}"] * 5
    adv = ["s_add_u32 s46, s46, 128", f"s_add_u32 s47, s47, {64*2688}", "s_cmp_eq_u32 s46, 896",
           "s_cselect_b32 s46, 0, s46", "s_cselect_b32 s47, s40, s47"]
    a("G_pro:")
    for p, d in zip(pre, dma):
        if p: a(p + "\ns_nop 0")
        a(d)
    a("\n".join(adv))
    a(f"""
s_add_u32 s41, s41, 32768
s_add_u32 s43, s43, 1
s_cmp_lt_u32 s43, 2
s_cbranch_scc1 G_pro
;STAMP 0
s_and_b32 s44, s3, 1
s_lshr_b32 s45, s3, 1
v_bfe_u32 v{T2}, v0, 1, 3
v_xor_b32 v{T2}, v{T2}, v3
v_lshlrev_b32 v{T2}, 4, v{T2}
v_lshl_add_u32 v{T2}, v2, 7, v{T2}
s_lshl_b32 s36, s44, 12
s_add_u32 s36, s36, {RING}
v_add_u32 v{XR}, s36, v{T2}
v_xor_b32 v{XR+1}, 32, v{XR}
v_xor_b32 v{XR+2}, 64, v{XR}
v_xor_b32 v{XR+3}, 96, v{XR}
v_bfe_u32 v{T0}, v0, 2, 2
v_lshl_add_u32 v{T0}, v3, 3, v{T0}
v_lshlrev_b32 v{T0}, 6, v{T0}
v_and_b32 v{T2}, 16, v0
v_lshl_add_u32 v{T0}, v{T2}, 1, v{T0}
v_lshl_add_u32 v7, v{T1}, 3, v{T0}
s_mul_i32 s36, s45, 12288
s_add_u32 s36, s36, {RING+8192}
v_add_u32 v{WR}, s36, v7
""")
    for i in range(5):
        a(f"v_mov_b32 v{XC+i}, v{XR+i}")
    for i in range(64):
        a(f"v_mov_b32 v{FB+i}, 0")
    a("s_mov_b32 s43, 0\ns_mov_b32 s50, 0")
    rX = lambda u, F: [f"ds_read_b128 {vr(F,4)}, v{XC+u}"]
    rW = lambda u, F, c: [f"ds_read_b64_tr_b16 {vr(F+4+4*c+2*t,2)}, v{WC} offset:{c*4096+u*1024+t*256}" for t in range(2)]
    def mf(F, c):
        a(f"v_mfma_f32_32x32x16_bf16 {vr(ACC+16*c,16)}, {vr(F+4+4*c,4)}, {vr(F,4)}, {vr(ACC+16*c,16)}")
    side = [[] for _ in range(12)]
    for g, (F, u) in ((0, (FB, 1)), (1, (FA, 2)), (2, (FB, 3))):
        for c in range(3):
            side[3*g + c] = rW(u, F, c) + (rX(u, F) if c == 2 else [])
    for i in range(8):
        side[i].append(dma[i])
        if i + 1 < 8 and pre[i + 1]: side[i].append(pre[i + 1])
    side[8] += adv[:2]
    side[9] = adv[2:] + ["s_add_u32 s41, s38, s50", "s_add_u32 s50, s50, 32768", "s_cmp_eq_u32 s50, 98304", "s_cselect_b32 s50, 0, s50"]
    side[10] = ["s_cmp_ge_u32 s43, 4"] + [f"v_add_u32 v{XC+i}, s50, v{XR+i}" for i in range(5)]
    side[11] = ["s_cselect_b32 s41, 0x30000, s41", "s_cselect_b32 s46, 0x70000000, s46", "s_cselect_b32 s47, s46, s47",
                "s_add_u32 s43, s43, 1", "s_cmp_lt_u32 s43, 7"]
    a(".p2align 3\nG_loop:\ns_waitcnt vmcnt(8) lgkmcnt(0)\ns_barrier\n;STAMPI\n" + pre[0])
    for x in rX(0, FA) + rW(0, FA, 0) + rW(0, FA, 1) + rW(0, FA, 2): a(x)
    n = 0
    for g, F in enumerate((FB, FA, FB, FA)):
        if g: a("s_waitcnt lgkmcnt(7)")
        for c in range(3):
            mf(F, c)
            for x in side[n]: a(x)
            n += 1
    a("s_cbranch_scc1 G_loop\ns_waitcnt lgkmcnt(0)")
    for c in range(3): mf(FB, c)
    TK, Z = 8, 10
    a(f"""
;STAMP 1
""")
    token_issue(a, TK, Z)
    a(f"""
v_mul_u32_u24 v{T0}, {512+64}, v3
v_lshlrev_b32 v{T1}, 4, v2
v_xor_b32 v{XC}, v{T0}, v{T1}
v_xor_b32 v{XC+1}, 128, v{XC}
s_lshl1_add_u32 s36, s35, s44
s_mul_i32 s36, s36, {QKV_T}
s_lshl1_add_u32 s37, s34, s45
s_mul_i32 s37, s37, 3
s_lshl_b32 s38, s37, 11
s_add_u32 s36, s36, s38
""")
    for c in range(3):
        A = ACC + 16*c
        a(f"s_cmp_lt_u32 s37, {14-c}\ns_cbranch_scc0 G_noscale{c}\ns_mov_b32 s38, {hex(f2u(QSCALE))}")
        for i in range(8):
            a(f"v_pk_mul_f32 {vr(A+2*i,2)}, {vr(A+2*i,2)}, s[38:39] op_sel_hi:[1,0]")
        a(f"G_noscale{c}:")
        for i in range(8):
            a(f"v_cvt_pk_bf16_f32 v{A+i}, v{A+2*i}, v{A+2*i+1}")
        a("s_nop 0")
        for p in range(2):
            a(f"v_permlane32_swap_b32 v{A+4*p}, v{A+4*p+2}\nv_permlane32_swap_b32 v{A+4*p+1}, v{A+4*p+3}")
        for p in range(2):
            a(f"buffer_store_dwordx4 {vr(A+4*p,4)}, v{XC+p}, s[12:15], s36 offen offset:{1024*p} sc1")
        if c < 2: a("s_add_u32 s36, s36, 2048")
    a(";STAMP 10\ns_setprio 0\ns_mov_b32 s51, 1")

KA, VA, TT = 4, 12, 16
VF, P, Q, S, O, KF = 24, 32, 40, [72, 88], 104, 168
NM = 120
OK_ = O + 48
TK, Z = 8, 10
PT = 14

def rdV(a, slot, u):
    for t in range(2):
        a(f"ds_read_b64_tr_b16 {vr(VF+4*u+2*t,2)}, v{VA+t} offset:{slot*VSLOT+256*u}")
def qk(a, Sx, kb, q, u, c0="0"):
    c = c0 if u == 0 else vr(Sx, 16)
    a(f"v_mfma_f32_32x32x16_bf16 {vr(Sx,16)}, {vr(KF+8*kb+4*u,4)}, {vr(Q+8*q+4*u,4)}, {c}")
def pv(a, q, u):
    a(f"v_mfma_f32_32x32x16_bf16 {vr(O+16*q,16)}, {vr(VF+4*u,4)}, {vr(P+4*u,4)}, {vr(O+16*q,16)}")

def attn(a):
    T = TT
    a("L_attn:")
    for i in range(64):
        a(f"v_mov_b32 v{O+i}, 0")
    for i in range(4):
        a(f"v_mov_b32 v{P+4+i}, 0\nv_mov_b32 v{VF+4+i}, 0")
        for k in (0, 1, 6, 7): a(f"v_mov_b32 v{Q+8*i+k}, 0")
    get_role(a, "A_role", Z, T)
    a(f"""
s_and_b32 s36, s69, 15
s_and_b32 s39, s69, 1
s_lshr_b32 s37, s69, 4
s_mul_i32 s38, s36, 7
s_lshr_b32 s38, s38, 1
v_lshlrev_b32 v{T}, 4, v2
v_add_u32 v{T+1}, s38, v3
v_and_b32 v{T+1}, 3, v{T+1}
v_lshlrev_b32 v{T+1}, 6, v{T+1}
v_xor_b32 v{T+1}, v{T+1}, v{T}
v_lshl_add_u32 v{KA}, v3, 9, v{T+1}
v_xor_b32 v{KA+1}, 128, v{KA}
s_mul_i32 s40, s3, {VWAVE}
s_add_u32 s40, s40, {VR}
v_bfe_u32 v{T}, v0, 4, 1
v_bfe_u32 v{T+1}, v0, 1, 1
v_lshl_add_u32 v{T}, v{T}, 1, v{T+1}
v_bfe_u32 v{T+1}, v0, 2, 2
v_lshl_add_u32 v{T+1}, v3, 2, v{T+1}
v_lshlrev_b32 v{T+1}, 4, v{T+1}
v_add_u32 v{T+2}, s38, v{T}
v_and_b32 v{T+2}, 3, v{T+2}
v_lshlrev_b32 v{T+2}, 6, v{T+2}
v_xor_b32 v{T+1}, v{T+1}, v{T+2}
v_lshl_add_u32 v{T+1}, v{T}, 9, v{T+1}
v_and_b32 v{T+2}, 1, v0
v_lshl_add_u32 v{T+1}, v{T+2}, 3, v{T+1}
v_xor_b32 v{T+2}, 128, v{T+1}
s_movk_i32 s41, 0x1111
s_cmp_eq_u32 s39, 0
s_cselect_b32 exec_lo, 0x88880000, s41
s_mov_b32 exec_hi, exec_lo
v_mov_b32 v{T+1}, 2048
v_mov_b32 v{T+2}, 2048
s_mov_b64 exec, -1
v_add_u32 v{VA}, s40, v{T+1}
v_add_u32 v{VA+1}, s40, v{T+2}
v_lshrrev_b32 v{T}, 1, v0
v_mul_u32_u24 v{T}, {VSLOT}, v{T}
v_and_b32 v{T+1}, 1, v0
v_lshl_add_u32 v{T}, v{T+1}, 8, v{T}
v_add_u32 v{T}, s40, v{T}
v_mov_b32 v{T+2}, 0x3f80
v_mov_b32 v{T+3}, 0
s_mov_b64 exec, 0xff
ds_write_b64 v{T}, {vr(T+2,2)} offset:2048
s_mov_b64 exec, -1
v_bfe_u32 v{T}, v0, 4, 1
v_add_u32 v{T}, 1, v{T}
s_lshl_b32 s41, s3, 3
v_and_b32 v{T+1}, 7, v0
v_add_u32 v{T+1}, s41, v{T+1}
s_lshl_b32 s41, s37, 1
s_mov_b32 exec_lo, 0
v_mov_b32 v{T}, 0
v_and_b32 v{T+1}, 1, v0
v_add_u32 v{T+1}, s41, v{T+1}
s_mov_b32 exec_lo, -1
v_mul_u32_u24 v{T}, 56, v{T}
v_bfe_u32 v{T+2}, v0, 3, 1
v_mad_u32_u24 v{T}, v{T+2}, 3, v{T}
v_add_u32 v{T}, s38, v{T}
v_mul_u32_u24 v{T}, 171, v{T}
v_lshrrev_b32 v{T}, 12, v{T}
v_lshl_add_u32 v{T}, v{T}, 5, v{T+1}
v_lshlrev_b32 v{T}, 7, v{T}
s_mul_i32 s16, s3, {16*QKV_T}
s_add_u32 s41, s38, 56
s_lshl_b32 s41, s41, 9
s_add_u32 s16, s16, s41
s_add_u32 s17, s16, {16*QKV_T}
s_mul_i32 s18, s68, {2*QKV_T}
s_add_u32 s16, s16, s18
s_mov_b32 s18, s16
s_lshl2_add_u32 s42, s37, s3
s_lshl4_add_u32 s42, s42, s36
s_lshl_b32 s42, s42, 11
s_add_u32 s42, s42, {O_OFF}
s_lshl2_add_u32 s21, s69, s3
s_lshl_b32 s21, s21, 7
s_add_u32 s21, s21, {FO_OFF}
v_mov_b32 v{PT}, s21
s_mov_b64 exec, 0xffff
v_lshl_add_u32 v{PT}, v0, 7, s42
s_mov_b64 exec, -1
s_lshl_b32 s20, s38, 9
""")
    for q in range(4):
        a(f"""
s_add_u32 s41, s3, {q+1}
s_and_b32 s41, s41, 3
s_lshl2_add_u32 s41, s37, s41
s_mul_i32 s41, s41, {QKV_T}
s_add_u32 s{24+q}, s41, s20
""")
    ldK = lambda kb: [f"buffer_load_dwordx4 {vr(KF+8*kb,4)}, v{KA}, s[12:15], s16 offen sc1",
                      f"buffer_load_dwordx4 {vr(KF+8*kb+4,4)}, v{KA+1}, s[12:15], s16 offen offset:1024 sc1"]
    ldV = ["buffer_load_dwordx4 v1, s[12:15], s19 offen sc1 lds", "buffer_load_dwordx4 v1, s[12:15], s19 offen offset:1024 sc1 lds"]
    preV = lambda slot: [f"s_add_u32 m0, s40, {slot*VSLOT}", f"s_add_u32 s19, s16, {56*512}"]
    adv = [f"s_add_u32 s16, s16, {QKV_T}", f"s_sub_u32 s41, s16, {16*QKV_T}", "s_cmp_ge_u32 s16, s17", "s_cselect_b32 s16, s41, s16",
           "s_cmp_eq_u32 s16, s18", "s_cselect_b32 s16, 0x70000000, s16"]
    for x in preV(0): a(x)
    a(f"""
s_lshl_b32 s22, s68, 15
s_add_u32 s22, s22, {FQ_OFF}
s_cmp_eq_u32 s51, 0
s_cbranch_scc1 A_poll
v_mov_b32 v{T+1}, 1
s_waitcnt vmcnt(0)
;STAMP 2
s_mov_b64 exec, 1
ds_add_rtn_u32 v{T+1}, v{Z}, v{T+1} offset:{MISC}
s_mov_b64 exec, -1
""")
    token_finish(a, "A_tok", TK, Z)
    a(f"""
s_add_u32 s41, s61, {FQ_OFF}
s_waitcnt lgkmcnt(0)
v_readfirstlane_b32 s23, v{T+1}
s_cmp_lg_u32 s23, 3
s_cbranch_scc1 A_poll
""")
    publish8(a, TK, T + 1, "s41")
    a("A_poll:\n;STAMP 11")
    spin_global(a, "A_spin", T + 2, T, "s22", 0x303ffffffff)
    a(";STAMP 3")
    for x in ldK(0): a(x)
    def ldQ(q, odd):
        r = Q + 8*q
        if not odd:
            a(f"""
buffer_load_dwordx4 {vr(r,4)}, v{KA}, s[12:15], s{24+q} offen sc1
s_mov_b32 exec_hi, 0
buffer_load_dwordx4 {vr(r+4,4)}, v{KA+1}, s[12:15], s{24+q} offen offset:1024 sc1
s_not_b64 exec, exec
buffer_load_dwordx2 {vr(r+4,2)}, v{KA+1}, s[12:15], s{24+q} offen offset:1024 sc1
s_mov_b32 exec_lo, -1
""")
        else:
            a(f"""
buffer_load_dwordx4 {vr(r+4,4)}, v{KA+1}, s[12:15], s{24+q} offen offset:1024 sc1
s_mov_b32 exec_hi, 0
buffer_load_dwordx2 {vr(r+2,2)}, v{KA}, s[12:15], s{24+q} offen offset:8 sc1
s_not_b64 exec, exec
buffer_load_dwordx4 {vr(r,4)}, v{KA}, s[12:15], s{24+q} offen sc1
s_mov_b32 exec_lo, -1
""")
    a("s_cmp_eq_u32 s39, 0\ns_cbranch_scc0 A_odd")
    for odd in (0, 1):
        if odd: a("s_branch A_z\nA_odd:")
        ldQ(0, odd)
        for x in ldV: a(x)
        for q in range(1, 4): ldQ(q, odd)
    a("A_z:")
    for x in adv: a(x)
    for x in preV(1) + ldK(1) + ldV + adv: a(x)
    a("s_mov_b32 s43, 0\ns_waitcnt vmcnt(15)\n;STAMP 4")
    qk(a, S[0], 0, 0, 0); qk(a, S[0], 0, 0, 1)
    for t in range(2, 4):
        for x in preV(t) + ldK(t) + ldV + adv: a(x)
    a("s_waitcnt vmcnt(21) lgkmcnt(0)")
    rdV(a, 0, 0)
    a(".p2align 3\nA_loop:")
    for t in range(4):
        side = [[[] for _ in range(4)] for _ in range(4)]
        side[0][0] = (["s_waitcnt vmcnt(18)"] if t == 0 else []) + [("V", t, 1)]
        side[0][1] = [preV(t)[0]]
        side[0][2] = ["s_waitcnt lgkmcnt(2)"]
        side[0][3] = ["s_waitcnt lgkmcnt(0)"]
        side[1][0] = [preV(t)[1]] + (["s_waitcnt vmcnt(15)"] if t == 0 else [])
        if t == 0: side[2][0] = ["s_waitcnt vmcnt(14)"]
        if t == 3: side[2][1] = [f"buffer_load_dword v{PT+1}, v{PT}, s[12:15], 0 offen sc1"]
        side[1][1] = [ldV[0]]
        side[1][2] = [ldV[1]]
        side[2][2] = [ldK(t)[0]]
        side[2][3] = [ldK(t)[1]]
        side[3][0] = ["s_waitcnt vmcnt(12)"]
        side[3][1] = adv[0:2]
        side[3][2] = adv[2:4]
        side[3][3] = [("V", (t + 1) % 4, 0)] + adv[4:6]
        for q in range(4):
            Sc, Sn = S[q % 2], S[(q + 1) % 2]
            kb = t if q < 3 else (t + 1) % 4
            for g in range(4):
                a(f"v_exp_f32 v{Sc+4*g}, v{Sc+4*g}\nv_exp_f32 v{Sc+4*g+1}, v{Sc+4*g+1}")
                if g == 0: pv(a, (q + 3) % 4, 1)
                elif g == 3: pv(a, q, 0)
                else: qk(a, Sn, kb, (q + 1) % 4, g - 1)
                for s in side[q][g]:
                    if isinstance(s, tuple): rdV(a, s[1], s[2])
                    else: a(s)
                a(f"v_exp_f32 v{Sc+4*g+2}, v{Sc+4*g+2}\nv_exp_f32 v{Sc+4*g+3}, v{Sc+4*g+3}")
                a(f"v_cvt_pk_bf16_f32 v{P+2*g}, v{Sc+4*g}, v{Sc+4*g+1}\nv_cvt_pk_bf16_f32 v{P+2*g+1}, v{Sc+4*g+2}, v{Sc+4*g+3}")
    a(f"""
s_add_u32 s43, s43, 1
s_cmp_lt_u32 s43, 4
s_cbranch_scc1 A_loop
;STAMP 5
s_barrier
""")
    pv(a, 3, 1)
    for q in range(3):
        a(f"""
s_add_u32 s41, s3, {q+1}
s_and_b32 s41, s41, 3
s_mul_i32 s41, s41, 12288
v_add_u32 v{T}, s41, v1
""")
        for i in range(4):
            a(f"ds_write_b128 v{T}, {vr(O+16*q+4*i,4)} offset:{4096*q+1024*i}")
    a(f"""
s_mul_i32 s41, s3, 12288
v_add_u32 v{T}, s41, v1
s_waitcnt lgkmcnt(0)
s_barrier
;STAMP 6
""")
    for i in range(12):
        a(f"ds_read_b128 {vr(O+4*i,4)}, v{T} offset:{1024*i}")
    for q in range(3):
        a(f"s_waitcnt lgkmcnt({8-4*q})")
        for i in range(8):
            a(f"v_pk_add_f32 {vr(OK_+2*i,2)}, {vr(OK_+2*i,2)}, {vr(O+16*q+2*i,2)}")
    a(f"""
s_mov_b32 s44, 0
A_norm:
s_cmp_eq_u32 s39, 0
s_cbranch_scc0 A_nodd
v_mov_b32 v{T+2}, v{OK_+12}
v_mov_b32 v{T+3}, v{OK_+12}
s_mov_b32 exec_lo, 0
v_mov_b32 v{OK_+12}, 0
s_mov_b32 exec_lo, -1
v_permlane32_swap_b32 v{T+2}, v{T+3}
s_branch A_nj
A_nodd:
v_mov_b32 v{T+2}, v{OK_}
v_mov_b32 v{T+3}, v{OK_}
s_mov_b32 exec_hi, 0
v_mov_b32 v{OK_}, 0
s_mov_b32 exec_hi, -1
v_permlane32_swap_b32 v{T+3}, v{T+2}
A_nj:
s_mov_b32 s46, 0x30800000
s_mov_b32 s47, 0x4e800000
v_rcp_f32 v{T+2}, v{T+3}
v_cmp_nge_f32 vcc, v{T+3}, s46
v_cmp_nle_f32 s[66:67], v{T+3}, s47
s_or_b64 vcc, vcc, s[66:67]
s_cmp_lg_u32 s44, 0
s_cbranch_scc1 A_store
s_cbranch_vccnz L_slow
A_store:
""")
    for i in range(8):
        a(f"v_pk_mul_f32 {vr(OK_+2*i,2)}, {vr(OK_+2*i,2)}, {vr(T+2,2)} op_sel_hi:[1,0]")
    for i in range(8):
        a(f"v_cvt_pk_bf16_f32 v{OK_+i}, v{OK_+2*i}, v{OK_+2*i+1}")
    a("s_nop 0")
    for p in range(2):
        a(f"v_permlane32_swap_b32 v{OK_+4*p}, v{OK_+4*p+2}\nv_permlane32_swap_b32 v{OK_+4*p+1}, v{OK_+4*p+3}")
    for p in range(2):
        a(f"buffer_store_dwordx4 {vr(OK_+4*p,4)}, v1, s[12:15], s42 offen offset:{1024*p}")

def slow(a):
    T = TT
    a(f"""
L_slow:
s_waitcnt vmcnt(0)
s_add_u32 s45, s38, 56
s_lshl_b32 s45, s45, 9
s_mov_b32 m0, s40
""")
    for i in range(16):
        a(f"v_mov_b32 v{OK_+i}, 0\nv_mov_b32 v{NM+i}, 0")
    a(f"""
v_mov_b32 v{T+2}, 0xff800000
S_pass:
s_mov_b32 s43, 0
s_mov_b32 s16, s45
S_loop:
s_add_u32 s19, s16, {56*512}
buffer_load_dwordx4 {vr(KF,4)}, v{KA}, s[12:15], s16 offen sc1
buffer_load_dwordx4 {vr(KF+4,4)}, v{KA+1}, s[12:15], s16 offen offset:1024 sc1
buffer_load_dwordx4 v1, s[12:15], s19 offen sc1 lds
buffer_load_dwordx4 v1, s[12:15], s19 offen offset:1024 sc1 lds
s_add_u32 s16, s16, {QKV_T}
s_waitcnt vmcnt(0)
""")
    rdV(a, 0, 0); rdV(a, 0, 1)
    qk(a, S[0], 0, 3, 0, vr(NM, 16)); qk(a, S[0], 0, 3, 1)
    a("s_nop 11\ns_waitcnt lgkmcnt(0)\ns_cmp_eq_u32 s44, 0\ns_cbranch_scc0 S_exp")
    for i in range(8):
        a(f"v_max3_f32 v{T+2}, v{T+2}, v{S[0]+2*i}, v{S[0]+2*i+1}")
    a("s_branch S_next\nS_exp:")
    for i in range(16):
        a(f"v_exp_f32 v{S[0]+i}, v{S[0]+i}")
    for i in range(8):
        a(f"v_cvt_pk_bf16_f32 v{P+i}, v{S[0]+2*i}, v{S[0]+2*i+1}")
    a("s_nop 1")
    pv(a, 3, 0); pv(a, 3, 1)
    a(f"""
S_next:
s_add_u32 s43, s43, 1
s_cmp_lt_u32 s43, 64
s_cbranch_scc1 S_loop
s_nop 12
s_cmp_eq_u32 s44, 1
s_cbranch_scc1 A_norm
s_mov_b32 s44, 1
v_mov_b32 v{T+3}, v{T+2}
s_nop 1
v_permlane32_swap_b32 v{T+2}, v{T+3}
s_nop 1
v_max_f32 v{T+2}, v{T+2}, v{T+3}
""")
    for i in range(16):
        a(f"v_sub_f32 v{NM+i}, 0, v{T+2}")
    a("s_branch S_pass")

def outproj(a):
    T = TT
    OF = 104
    WF = 24
    AC = [72, 88]
    WR, YR, G = 4, 5, 6
    a(f"""
s_and_b32 s44, s3, 1
s_lshr_b32 s45, s3, 1
s_bfe_u32 s34, s69, 0x30002
s_and_b32 s46, s69, 3
s_lshl2_add_u32 s46, s68, s46
s_lshl1_add_u32 s46, s46, s44
s_lshl1_add_u32 s47, s34, s45
; W tr base (8hf + i/4)*64 + ((l>>4)&1)*32 + (i%4)*8 + kh*224 rows ; y tr base
v_bfe_u32 v{T}, v0, 2, 2
v_lshl_add_u32 v{T}, v3, 2, v{T}
v_lshlrev_b32 v{T}, 6, v{T}
v_and_b32 v{T+1}, 16, v0
v_lshl_add_u32 v{T}, v{T+1}, 1, v{T}
v_and_b32 v{T+1}, 3, v0
v_lshl_add_u32 v{T}, v{T+1}, 3, v{T}
s_mul_i32 s41, s3, {YG_SLOT}
s_add_u32 s41, s41, {YG}
v_add_u32 v{YR}, s41, v{T}
s_lshl_b32 s43, s44, 7
s_add_u32 s41, s41, s43
v_lshl_add_u32 v{G}, v2, 2, s41
v_lshl_add_u32 v{T}, v3, 8, v{T}
s_mul_i32 s41, s45, {224*64}
s_add_u32 s41, s41, {WO_B}
v_add_u32 v{WR}, s41, v{T}
v_lshlrev_b32 v{T}, 9, v0
s_lshr_b32 s41, s46, 2
s_lshl1_add_u32 s41, s41, s45
s_lshl_b32 s41, s41, 5
s_and_b32 s43, s46, 3
s_add_u32 s41, s41, s43
s_lshl_b32 s41, s41, 7
s_add_u32 s41, s41, {FO_OFF}
s_lshl1_add_u32 s42, s46, s45
s_lshl_b32 s42, s42, 14
s_add_u32 s42, s42, {O_OFF}
s_waitcnt vmcnt(0)
;STAMP 7
s_mov_b64 exec, 1
buffer_store_dwordx2 {vr(TK,2)}, v{Z}, s[12:15], s21 offen
s_mov_b64 exec, -1
s_cmp_eq_u32 s34, 7
s_cbranch_scc1 L_end
ds_read_b32 v{G}, v{G} offset:2048
""")
    spin_global(a, "O_spo", T + 2, T, "s41", 0xff)
    a(";STAMP 8")
    for k in range(16):
        a(f"buffer_load_dwordx4 {vr(OF+4*k,4)}, v1, s[12:15], s42 offen offset:{1024*(k%4)} sc1")
        if k % 4 == 3 and k < 15: a("s_add_u32 s42, s42, 4096")
    def rw(k):
        row = 56 * (k // 4) + (0, 16, 24, 40)[k % 4]
        F = WF + 8 * (k % 2)
        for c in range(2):
            for t in range(2):
                a(f"ds_read_b64_tr_b16 {vr(F+4*c+2*t,2)}, v{WR} offset:{c*28672+row*64+t*256}")
    rw(0); rw(1)
    for k in range(16):
        F = WF + 8 * (k % 2)
        a(f"s_waitcnt vmcnt({15-k}) lgkmcnt({4 if k < 15 else 0})")
        for c in range(2):
            cc = "0" if k == 0 else vr(AC[c], 16)
            a(f"v_mfma_f32_32x32x16_bf16 {vr(AC[c],16)}, {vr(F+4*c,4)}, {vr(OF+4*k,4)}, {cc}")
        if k + 2 < 16: rw(k + 2)
    F = 24
    for q in range(4):
        a(f"ds_read_b64_tr_b16 {vr(F+2*q,2)}, v{YR} offset:{512*q}")
    a(f"""
;STAMP 9
v_add_u32 v{T}, s40, v1
s_xor_b32 s41, s3, 2
s_mul_i32 s41, s41, {VWAVE}
s_add_u32 s41, s41, {VR}
v_add_u32 v{T+1}, s41, v1
v_sub_f32 v{G+5}, 1.0, v{G}
s_nop 0
s_cmp_eq_u32 s45, 0
s_cbranch_scc1 O_noswap
""")
    for i in range(16):
        a(f"v_swap_b32 v{AC[0]+i}, v{AC[1]+i}")
    a("O_noswap:")
    for i in range(4):
        a(f"ds_write_b128 v{T}, {vr(AC[1]+4*i,4)} offset:{1024*i}")
    a("s_waitcnt lgkmcnt(0)\ns_barrier")
    for i in range(4):
        a(f"ds_read_b128 {vr(AC[1]+4*i,4)}, v{T+1} offset:{1024*i}")
    for i in range(8):
        a(f"v_lshlrev_b32 v{F+8+2*i}, 16, v{F+i}\nv_and_b32 v{F+9+2*i}, 0xffff0000, v{F+i}")
    for i in range(16):
        a(f"v_mul_f32 v{F+8+i}, v{F+8+i}, v{G+5}")
    for i in range(16):
        a(f"v_fmac_f32 v{F+8+i}, v{AC[0]+i}, v{G}")
    a(f"""
v_mul_u32_u24 v{T}, 896, v2
v_lshl_add_u32 v{T}, v3, 4, v{T}
s_mul_i32 s41, s46, {32*896}
s_lshl_b32 s42, s47, 6
s_add_u32 s41, s41, s42
s_waitcnt lgkmcnt(0)
""")
    for i in range(16):
        a(f"v_fmac_f32 v{F+8+i}, v{AC[1]+i}, v{G}")
    for i in range(8):
        a(f"v_cvt_pk_bf16_f32 v{F+i}, v{F+8+2*i}, v{F+9+2*i}")
    a("s_nop 0")
    for p in range(2):
        a(f"v_permlane32_swap_b32 v{F+4*p}, v{F+4*p+2}\nv_permlane32_swap_b32 v{F+4*p+1}, v{F+4*p+3}")
    for p in range(2):
        a(f"buffer_store_dwordx4 {vr(F+4*p,4)}, v{T}, s[56:59], s41 offen offset:{32*p}")
    a("s_endpgm")

from fused_aux import aux, gate
```

```python
from asmlib import *
from layout import *
import fused as F
import os
DUMPK = os.environ.get("DUMPK")
VAR = os.environ.get("VAR", "")

def _rho():
    r = [[(j >> 1) + 8 * (j & 1) for j in range(16)]]
    partner = [13, 12, 15, 14, 9, 8, 11, 10]
    for e in range(3):
        n = [None] * 16
        for j in range(8):
            n[j] = r[e][2*j]; n[partner[j]] = n[j] ^ 8
        assert sorted(n) == list(range(16))
        r.append(n)
    return r
RHO = _rho()

def ticket(a, dst, tmp):
    a(f"""
s_lshl_b32 s41, s68, 4
s_add_u32 s41, s41, 128
v_mov_b32 v{tmp}, s41
v_mov_b32 v{dst}, 1
s_mov_b64 exec, 1
global_atomic_add v{dst}, v{tmp}, v{dst}, s[48:49] sc0 sc1
s_mov_b64 exec, -1
""")

def put_role(a, src, z):
    a(f"""
v_readfirstlane_b32 s41, v{src}
s_and_b32 s41, s41, 31
s_lshl_b32 s69, s68, 5
s_add_u32 s41, s41, s69
s_add_u32 s41, s41, 1
v_mov_b32 v{src}, s41
ds_write_b32 v{z}, v{src} offset:{F.MISC+8}
""")

def aux(a):
    SL = F.SL
    TK, Z = 8, 10
    RAW = 12
    DT = 16
    AA = 20
    RL = 24
    XF = 19
    MA = 25
    T = 26
    GA = 216
    W = 34
    S0 = 38
    H = [42, 44]
    R = [46, 62]
    ACC = 78
    PK = 94
    FR = 46
    a(f"""
L_aux:
s_sub_u32 s3, s3, 4
s_lshr_b32 s36, s3, 1
s_and_b32 s37, s3, 1
s_lshr_b32 s39, s61, 5
s_lshr_b32 s38, s61, 6
s_add_u32 s38, s38, s36
s_lshl_b32 s40, s38, 9
s_lshl_b32 s41, s37, 8
s_add_u32 s40, s40, s41
v_lshl_add_u32 v{T}, v0, 2, s40
s_getpc_b64 s[66:67]
A_pc:
s_sub_u32 s66, s66, A_pc-{F.NAME}
s_subb_u32 s67, s67, 0
v_lshlrev_b32 v{T+1}, 7, v0
s_lshl_b32 s41, s3, 13
v_add_u32 v{T+1}, s41, v{T+1}
v_min_u32 v{T+1}, L_code_end-{F.NAME}-4, v{T+1}
global_load_dword v{T+2}, v{T+1}, s[66:67]
v_mov_b32 v{Z}, 0
v_mov_b32 v{MA}, {F.MISC}
v_lshl_add_u32 v{T+3}, v0, 2, v{MA}
ds_write_b32 v{T+3}, v{Z}
s_waitcnt lgkmcnt(0)
global_load_dword v{RAW}, v{T}, s[16:17]
global_load_dword v{RAW+1}, v{T}, s[18:19]
global_load_dword v{RAW+2}, v{T}, s[20:21]
global_load_dword v{RAW+3}, v{T}, s[22:23]
s_load_dword s44, s[24:25], s39
s_load_dword s45, s[26:27], s39
s_mov_b32 s47, 0
s_cmp_lg_u32 s3, 1
s_cbranch_scc1 X_notick
""")
    ticket(a, RL, T + 1)
    a(f"""
s_mov_b32 s47, 1
X_notick:
s_or_b32 s41, s2, s3
s_cmp_lg_u32 s41, 0
s_cbranch_scc1 X_notok
s_or_b32 s64, s64, 1
v_mov_b32 v{TK}, s64
v_mov_b32 v{TK+1}, s65
v_mov_b32 v{TK+3}, 0
s_mov_b64 exec, 1
global_atomic_cmpswap_x2 v{Z}, {vr(TK,4)}, s[48:49] sc1
s_mov_b64 exec, -1
s_mov_b32 s47, 1
X_notok:
s_barrier
s_mul_i32 s42, s36, {F.CH_AREA}
s_mul_i32 s43, s37, {F.KG_AREA}
s_add_u32 s43, s43, s42
s_add_u32 s43, s43, {F.CPY}
s_add_u32 s46, s42, {F.TAB}
s_lshl_b32 s41, s3, 2
v_add_u32 v{MA}, s41, v{MA}
""")
    for i in range(16):
        a(f"v_mov_b32 v{ACC+i}, 0")
    a(f"""
s_mul_i32 s41, s37, {2480-2048}
s_add_u32 s41, s41, s42
v_add_u32 v{T}, s41, v1
ds_write_b128 v{T}, {vr(ACC,4)} offset:{F.XP}
ds_write_b128 v{T}, {vr(ACC,4)} offset:{F.XP+1024}
s_mul_i32 s50, s37, {F.TABK*256}
s_add_u32 s50, s50, s46
s_sub_u32 s41, s50, 16
v_mov_b32 v{T}, s41
s_mov_b64 exec, 1
ds_write_b128 v{T}, {vr(ACC,4)}
s_mov_b64 exec, -1
v_and_b32 v{T}, 15, v0
v_lshlrev_b32 v{T}, 2, v{T}
v_lshrrev_b32 v{T+3}, 4, v0
v_and_b32 v{T+1}, 16, v0
v_lshl_add_u32 v{T+1}, v{T+1}, 3, s43
v_lshl_add_u32 v{T+1}, v3, 6, v{T+1}
s_movk_i32 s41, {SL}
""")
    for e in range(4):
        c = sum(RHO[e][j] << (4*j) for j in range(16))
        a(f"""
s_mov_b32 s66, {hex(c & 0xffffffff)}
s_mov_b32 s67, {hex(c >> 32)}
v_lshrrev_b64 {vr(T+4,2)}, v{T}, s[66:67]
v_and_b32 v{T+4}, 15, v{T+4}
v_mad_u32_u24 v{AA+e}, v{T+4}, s41, v{T+1}
""")
    a(f"""
s_waitcnt lgkmcnt(0)
s_lshl_b32 s41, s36, 4
s_lshr_b32 s44, s44, s41
s_lshl_b32 s44, s44, 16
s_lshr_b32 s45, s45, s41
s_lshl_b32 s45, s45, 16
v_mov_b32 v{DT+2}, {hex(f2u(LOG2E))}
v_mul_f32 v{DT}, s44, v{DT+2}
v_exp_f32 v{DT}, v{DT}
s_mov_b64 exec, 1
v_mul_f32 v{ACC}, s45, 0.5
s_mov_b64 exec, -1
v_cvt_pk_bf16_f32 v{DT}, v{DT}, v{DT}
v_lshlrev_b32 v{DT}, 16, v{DT}
v_add_f32 v{DT+1}, v{DT}, v{DT}
v_lshlrev_b32 v{XF}, 7, v2
s_lshl_b32 s51, s68, 15
s_add_u32 s51, s51, {FQ_OFF + 224*128}
s_waitcnt vmcnt(1)
s_cmp_lg_u32 s47, 0
s_cbranch_scc1 X_go
s_waitcnt vmcnt(0)
X_go:
;STAMP 0
""")
    def cmul(d, x, w):
        return [f"v_mul_f32 v{d}, v{x}, v{w}", f"v_mul_f32 v{d+1}, v{x+1}, v{w}",
                f"v_fmac_f32 v{d}, v{x+1}, v{w+2}", f"v_fmac_f32 v{d+1}, v{x}, v{w+1}"]
    def csq(d, x, t):
        return [f"v_mul_f32 v{t}, v{x+1}, v{x+1}", f"v_mul_f32_e64 v{d+1}, v{x}, v{x+1} mul:2", f"v_fma_f32 v{d}, v{x}, v{x}, -v{t}"]
    def merge(x, y):
        out = []; i = j = 0
        while i < len(x) or j < len(y):
            if j >= len(y) or (i < len(x) and i * len(y) <= j * len(x)): out.append(x[i]); i += 1
            else: out.append(y[j]); j += 1
        return out
    R0, R1 = R
    L = lambda k: R0 + 2*k
    U = lambda k: R1 + 2*k
    stream = []
    for ps in range(2):
        LO = PK + 81*ps; HI = LO + 40
        ex = (lambda d, r: f"v_lshlrev_b32 v{d}, 16, v{r}") if ps == 0 else (lambda d, r: f"v_and_b32 v{d}, 0xffff0000, v{r}")
        stream += f"""
{ex(T, RAW)}
{ex(T+1, RAW+1)}
v_mul_f32 v{T}, v{T}, v{DT+2}
v_exp_f32 v{T}, v{T}
v_mul_f32 v{T+1}, v{T+1}, v{DT}
v_mul_f32 v{T+1}, 0.15915494, v{T+1}
v_cvt_pk_bf16_f32 v{T}, v{T}, v{T}
v_rndne_f32 v{T+2}, v{T+1}
v_lshlrev_b32 v{T}, 16, v{T}
v_sub_f32 v{T+1}, v{T+1}, v{T+2}
v_mul_f32 v{T}, v{T}, v{DT}
v_mul_f32 v{T}, v{T}, -v{DT+2}
v_cos_f32 v{W}, v{T+1}
v_sin_f32 v{W+1}, v{T+1}
v_exp_f32 v{T+2}, v{T}
v_mul_f32 v{T+1}, 0x41800000, v{T+1}
v_mul_f32 v{T}, 0x41800000, v{T}
v_mul_f32 v{W}, v{W}, v{T+2}
v_mul_f32 v{W+1}, v{W+1}, v{T+2}
v_cos_f32 v{S0}, v{T+1}
v_sin_f32 v{S0+2}, v{T+1}
v_exp_f32 v{T+2}, v{T}
v_sub_f32 v{W+2}, 0, v{W+1}
{ex(H[0], RAW+2)}
{ex(H[0]+1, RAW+3)}
v_mul_f32 v{S0}, v{S0}, v{T+2}
v_mul_f32 v{S0+2}, v{S0+2}, v{T+2}
v_mul_f32 v{H[0]}, v{H[0]}, v{DT+1}
v_mul_f32 v{H[0]+1}, v{H[0]+1}, -v{DT+1}
v_sub_f32 v{S0+1}, 0, v{S0+2}
""".strip().split("\n")
        lo_init = csq(L(2), W, T) + cmul(L(3), L(2), W) + csq(L(4), L(2), T) + cmul(L(5), L(4), W) + csq(L(6), L(3), T) + cmul(L(7), L(6), W)
        lo_b1 = []
        for k in range(4): lo_b1 += csq(U(2*k), L(4+k), T) + cmul(U(2*k+1), U(2*k), W)
        lo_sq = []
        for k in range(8): lo_sq += csq(U(k), U(k), T + (k % 2))
        hs = 0
        for b in range(5):
            if b >= 2: stream += csq(S0, S0, T + 2) + [f"v_sub_f32 v{S0+2}, 0, v{S0+1}"]
            if b == 0:
                cv = [f"v_mov_b32 v{LO}, 0x3f80", f"v_cvt_pk_bf16_f32 v{LO+1}, v{W}, v{W+1}"] + [f"v_cvt_pk_bf16_f32 v{LO+k}, v{L(k)}, v{L(k)+1}" for k in range(2, 8)]
            else:
                cv = [f"v_cvt_pk_bf16_f32 v{LO+8*b+k}, v{U(k)}, v{U(k)+1}" for k in range(8)]
            hi = []
            for k in range(9 if b == 4 else 8):
                hi.append(f"v_cvt_pk_bf16_f32 v{HI+8*b+k}, v{H[hs]}, v{H[hs]+1}")
                if k < 8:
                    hi += cmul(H[1-hs], H[hs], S0); hs ^= 1
            stream += merge((lo_init, lo_b1, lo_sq, lo_sq, lo_sq)[b] + cv, hi)
    B0 = int(os.environ.get("B0", "380")); BD = int(os.environ.get("BD", "70"))
    bars = [min(B0 + BD*i, len(stream)) for i in range(7)]
    nb = 0
    for i in range(len(stream) + 1):
        for _ in range(bars.count(i)):
            a("s_barrier")
            if nb == 3: a(f"global_load_dwordx2 {vr(TK,2)}, v{Z}, s[48:49] sc1")
            nb += 1
        if i < len(stream): a(stream[i])
    a(";STAMP 6\ns_setprio 1\ns_waitcnt vmcnt(0)\ns_cmp_lg_u32 s3, 1\ns_cbranch_scc1 X_norole")
    put_role(a, RL, Z)
    a("X_norole:")
    F.token_finish(a, "X_tok", TK, Z)
    a("s_mov_b32 m0, s43\n;STAMP 2\ns_nop 0")
    FAs = [46, PK]; FBs = [62, PK + 40]
    def rdA(e, fa):
        for q in range(4): a(f"ds_read_b128 {vr(fa+4*q,4)}, v{AA+e} offset:{16*q}")
    def rdB(fb):
        for q in range(4): a(f"ds_read_b128 {vr(fb+4*q,4)}, v{AA} offset:{16*SL+16*q}")
    def mfmas(e, fa, fb):
        for q in range(4):
            a(f"v_mfma_f32_16x16x32_bf16 {vr(ACC+4*e,4)}, {vr(fa+4*q,4)}, {vr(fb+4*q,4)}, {vr(ACC+4*e,4)}")
    for ps in range(2):
        LO = PK + 81*ps; HI = LO + 40
        wlo = lambda b: [a(f"ds_write_addtid_b32 v{LO+8*b+k} offset:{RHO[max(b-1,0)][(8 if b else 0)+k]*SL}") for k in range(8) if not (ps == 1 and b == 0 and k == 0)]
        whi = lambda b0, n: [a(f"ds_write_addtid_b32 v{HI+8*b0+k} offset:{(16+RHO[0][k])*SL}") for k in range(n)]
        wlo(0); wlo(1)
        if ps == 1:
            a("s_waitcnt lgkmcnt(15)"); mfmas(3, FAs[1], FBs[0])
            a(f"buffer_load_dwordx2 v[4:5], v{XF}, s[12:15], s51 offen sc1")
        whi(0, 16)
        rdA(0, FAs[0]); rdB(FBs[0])
        wlo(2); whi(2, 16)
        a("s_waitcnt lgkmcnt(15)"); mfmas(0, FAs[0], FBs[0])
        rdA(1, FAs[1]); rdB(FBs[1])
        wlo(3)
        rdA(2, FAs[0])
        wlo(4)
        a("s_waitcnt lgkmcnt(15)"); mfmas(1, FAs[1], FBs[1])
        whi(4, 9)
        a("s_waitcnt lgkmcnt(15)"); mfmas(2, FAs[0], FBs[1])
        rdA(3, FAs[1]); rdB(FBs[0])
    a("s_waitcnt vmcnt(0)\nv_cmp_ne_u64 vcc, v[4:5], s[62:63]\ns_cbranch_vccz X_xok")
    F.spin_global(a, "X_spx", 4, XF, "s51", 0xffffffff)
    a(f"""
X_xok:
s_lshl_b32 s41, s37, 7
v_add_u32 v{T}, s41, v0
s_lshl_b32 s44, s38, 12
s_add_u32 s44, s44, {XT_OFF}
s_lshl_b32 s45, s37, 11
s_add_u32 s45, s45, s42
s_add_u32 m0, s45, {F.XP + 31*80}
""")
    for i in range(3):
        a(f"""
v_mul_u32_u24 v{T+2}, 205, v{T}
v_lshrrev_b32 v{T+2}, 10, v{T+2}
v_sub_u32 v{T+2}, v{T}, v{T+2}
v_lshlrev_b32 v{T+2}, 4, v{T+2}
buffer_load_dwordx4 v{T+2}, s[12:15], s44 offen sc1 lds
""")
        if i < 2: a(f"v_add_u32 v{T}, 64, v{T}\ns_add_u32 m0, m0, 1024")
    a(f"""
s_lshl_b32 s41, s37, 10
s_sub_u32 s41, 2047, s41
v_sub_u32 v{T}, s41, v1
v_cvt_f32_i32 v{T+1}, v{T}
""")
    def magic():
        a(f"""
v_ffbh_u32 v{T+4}, v{T}
v_sub_u32 v{T+4}, 24, v{T+4}
v_med3_i32 v{T+4}, v{T+4}, 0, 3
v_lshlrev_b32 v{T+5}, 23, v{T+4}
v_add_u32 v{T+5}, 0x4b400000, v{T+5}
v_lshlrev_b32 v{T+6}, 2, v{T+5}
v_lshl_add_u32 v{T+4}, v{T+4}, 9, s46
v_sub_u32 v{T+4}, v{T+4}, v{T+6}
""")
    magic()
    for k in range(19):
        if k == 16:
            a(f"v_subrev_u32 v{T}, 16, v{T}\nv_max_i32 v{T}, 1, v{T}")
            magic()
        a(f"v_add_f32 v{GA+k}, v{T+1}, v{T+5}")
        if k < 18: a(f"v_add_f32 v{T+1}, -1.0, v{T+1}")
        a(f"v_lshl_add_u32 v{GA+k}, v{GA+k}, 2, v{T+4}")
    a("s_waitcnt lgkmcnt(0)")
    mfmas(3, FAs[1], FBs[0])
    a(";STAMP 1")
    a(f"""
v_and_b32 v{T}, 15, v0
v_lshlrev_b32 v{T}, 6, v{T}
v_lshl_add_u32 v{T}, v{T+3}, 4, v{T}
v_add_u32 v{T}, s50, v{T}
s_mov_b32 exec_lo, 0xff00ff00
s_mov_b32 exec_hi, 0xff00ff00
v_mov_b32 v{ACC+4}, v{ACC+8}
v_mov_b32 v{ACC+5}, v{ACC+9}
v_mov_b32 v{ACC+6}, v{ACC+10}
v_mov_b32 v{ACC+7}, v{ACC+11}
s_mov_b64 exec, -1
v_mov_b32 v{T+1}, 1
ds_write_b128 v{T}, {vr(ACC,4)}
ds_write_b128 v{T}, {vr(ACC+4,4)} offset:1024
s_mov_b32 exec_lo, 0x01ff01ff
s_mov_b32 exec_hi, 0x01ff01ff
ds_write_b128 v{T}, {vr(ACC+12,4)} offset:2048
s_mov_b64 exec, -1
ds_write_b32 v{MA}, v{T+1} offset:16
v_xor_b32 v{MA}, 4, v{MA}
v_mov_b32 v{T+4}, 0
v_mov_b32 v{T+5}, 0
v_mov_b32 v{T+6}, 0
v_mov_b32 v{T+7}, 0
""")
    F.spin_lds(a, "X_a1", MA, 16, 1, T + 2)
    V = 96
    CP = 136
    for k in range(19):
        a(f"ds_read2st64_b32 {vr(V+2*k,2)}, v{GA+k} offset0:0 offset1:{F.TABK}")
    a(f"""
v_lshrrev_b32 v{T}, 2, v0
v_mul_u32_u24 v{T}, {4160-64}, v{T}
v_add3_u32 v{T}, v{T}, v1, s42
s_mov_b64 exec, 0xffff
ds_write_b128 v{T}, {vr(T+4,4)} offset:{F.CPY+4096}
s_mov_b64 exec, -1
v_lshl_add_u32 v{T}, v0, 5, s45
s_waitcnt lgkmcnt(1)
""")
    for k in range(19):
        a(f"v_add_f32 v{V+2*k}, v{V+2*k}, v{V+2*k+1}")
    for q in range(4):
        for i in range(8):
            a(f"v_cvt_pk_bf16_f32 v{CP+8*q+i}, v{V+2*(q+2*i)}, v{V+2*(q+2*i+1)}")
    for q in range(4):
        for i in range(2):
            a(f"ds_write_b128 v{T}, {vr(CP+8*q+4*i,4)} offset:{F.CPY+4160*q+16*i}")
    if DUMPK:
        a(f"""
v_lshlrev_b32 v{T+2}, 5, v0
s_lshl_b32 s44, s38, 12
s_lshl_b32 s45, s37, 11
s_add_u32 s44, s44, s45
s_add_u32 s44, s44, {KD_OFF}
s_cmp_ge_u32 s38, 256
s_cselect_b32 s44, 0x70000000, s44
buffer_store_dwordx4 {vr(CP,4)}, v{T+2}, s[12:15], s44 offen
buffer_store_dwordx4 {vr(CP+4,4)}, v{T+2}, s[12:15], s44 offen offset:16
""")
    FA, GAa = 20, 21
    CF = 96
    A0, A1 = 176, 192
    a(f"""
v_sub_u32 v{T}, 31, v2
v_and_b32 v{T+2}, 3, v{T}
v_mul_u32_u24 v{T+2}, 4158, v{T+2}
v_lshl_add_u32 v{T}, v{T}, 1, v{T+2}
v_lshl_add_u32 v{T}, v3, 4, v{T}
s_lshl_b32 s41, s37, 10
s_add_u32 s41, s41, s42
s_add_u32 s41, s41, {F.CPY}
v_add_u32 v{FA}, s41, v{T}
v_mul_u32_u24 v{T}, 80, v2
v_lshl_add_u32 v{T}, v3, 4, v{T}
s_mul_i32 s41, s37, 1280
s_add_u32 s41, s41, s42
s_add_u32 s41, s41, {F.XP}
v_add_u32 v{GAa}, s41, v{T}
""")
    for i in range(32):
        a(f"v_mov_b32 v{A0+i}, 0")
    a(f"""
v_xor_b32 v{T}, 4, v{MA}
s_waitcnt vmcnt(0) lgkmcnt(0)
ds_write_b32 v{T}, v{T+1} offset:32
""")
    F.spin_lds(a, "X_a2", MA, 32, 1, T + 2)
    a(";STAMP 3")
    def crd(Fx, fo, go):
        a(f"""
ds_read_b64 {vr(Fx+4,2)}, v{FA} offset:{fo+2048}
ds_read_b64 {vr(Fx+6,2)}, v{FA} offset:{fo+2048+8}
ds_read_b128 {vr(Fx+8,4)}, v{GAa} offset:{go}
ds_read_b128 {vr(Fx+12,4)}, v{GAa} offset:{go+2560}
ds_read_b64 {vr(Fx,2)}, v{FA} offset:{fo}
ds_read_b64 {vr(Fx+2,2)}, v{FA} offset:{fo+8}
""")
    crd(CF, 0, 0); crd(CF + 16, 32, 32)
    a("s_mov_b32 s47, 0\n.p2align 3\nX_conv:")
    for s in range(2):
        Fx = CF + 16*s
        a(f"""
s_waitcnt lgkmcnt(6)
v_mfma_f32_32x32x16_bf16 {vr(A0,16)}, {vr(Fx+4,4)}, {vr(Fx+8,4)}, {vr(A0,16)}
v_mfma_f32_32x32x16_bf16 {vr(A1,16)}, {vr(Fx+4,4)}, {vr(Fx+12,4)}, {vr(A1,16)}
v_mfma_f32_32x32x16_bf16 {vr(A1,16)}, {vr(Fx,4)}, {vr(Fx+8,4)}, {vr(A1,16)}
""")
        crd(Fx, 64 + 32*s, 80 + 32*s)
    a(f"""
v_add_u32 v{FA}, 64, v{FA}
v_add_u32 v{GAa}, 80, v{GAa}
s_add_u32 s47, s47, 1
s_cmp_lt_u32 s47, 16
s_cbranch_scc1 X_conv
;STAMP 4
s_waitcnt lgkmcnt(0)
ds_write_b32 v{T}, v{T+1} offset:48
s_lshl_b32 s41, s37, 12
s_add_u32 s44, s41, s42
v_add_u32 v{T+4}, s44, v1
s_xor_b32 s41, s41, 4096
s_add_u32 s44, s41, s42
v_add_u32 v{T+3}, s44, v1
s_cmp_eq_u32 s37, 0
s_cbranch_scc1 X_noswap
""")
    for i in range(16):
        a(f"v_swap_b32 v{A0+i}, v{A1+i}")
    a("X_noswap:")
    F.spin_lds(a, "X_a3", MA, 48, 1, T + 2)
    for i in range(4):
        a(f"ds_write_b128 v{T+4}, {vr(A1+4*i,4)} offset:{1024*i}")
    a(f"s_waitcnt lgkmcnt(0)\nds_write_b32 v{T}, v{T+1} offset:64")
    F.spin_lds(a, "X_a4", MA, 64, 1, T + 2)
    for i in range(4):
        a(f"ds_read_b128 {vr(A1+4*i,4)}, v{T+3} offset:{1024*i}")
    a(f"""
v_lshlrev_b32 v{T}, 6, v2
v_lshl_add_u32 v{T}, v3, 4, v{T}
v_add_u32 v{T}, s44, v{T}
s_lshl_b32 s41, s38, 12
s_lshl_b32 s44, s37, 11
s_add_u32 s41, s41, s44
s_add_u32 s41, s41, {YT_OFF}
s_waitcnt lgkmcnt(0)
""")
    for i in range(16):
        a(f"v_add_f32 v{A0+i}, v{A0+i}, v{A1+i}")
    for i in range(8):
        a(f"v_cvt_pk_bf16_f32 v{A0+i}, v{A0+2*i}, v{A0+2*i+1}")
    a("s_nop 0")
    for p in range(2):
        a(f"v_permlane32_swap_b32 v{A0+4*p}, v{A0+4*p+2}\nv_permlane32_swap_b32 v{A0+4*p+1}, v{A0+4*p+3}")
    for p in range(2):
        a(f"ds_write_b128 v{T}, {vr(A0+4*p,4)} offset:{32*p}")
    for p in range(2):
        a(f"ds_read_b128 {vr(A1+4*p,4)}, v{T+3} offset:{1024*p}")
    for p in range(2):
        a(f"s_waitcnt lgkmcnt({1-p})\nbuffer_store_dwordx4 {vr(A1+4*p,4)}, v1, s[12:15], s41 offen offset:{1024*p} sc1")
    a(f"""
s_waitcnt vmcnt(0)
;STAMP 5
s_mov_b64 exec, 1
ds_add_rtn_u32 v{T+1}, v{Z}, v{T+1} offset:{F.MISC+4}
s_mov_b64 exec, -1
s_add_u32 s41, s61, {FY_OFF}
s_waitcnt lgkmcnt(0)
v_readfirstlane_b32 s44, v{T+1}
s_cmp_lg_u32 s44, 3
s_cbranch_scc1 X_nopub
""")
    F.publish8(a, TK, T + 1, "s41")
    a("X_nopub:\ns_setprio 0")
    F.spin_lds(a, "X_y4", Z, F.MISC + 4, 4, T + 2)
    F.spin_lds(a, "X_p1", Z, F.MISC, 4, T + 2)
    a("X_tail_wo:")
    F.get_role(a, "X_role", Z, T + 2)
    a(f"""
s_bfe_u32 s39, s69, 0x30002
s_cmp_eq_u32 s39, 7
s_cbranch_scc1 L_end
v_lshrrev_b32 v{T+2}, 2, v0
v_and_b32 v{T+3}, 3, v0
v_mul_u32_u24 v{T+2}, 896, v{T+2}
v_lshl_add_u32 v{T+2}, v{T+3}, 4, v{T+2}
s_mul_i32 s41, s3, {112*896}
s_lshl_b32 s44, s39, 7
s_add_u32 s41, s41, s44
s_mul_i32 s44, s3, 7168
s_add_u32 s44, s44, {F.WO_B}
s_add_u32 s45, s44, 7168
X_wo:
s_mov_b32 m0, s44
s_nop 0
buffer_load_dwordx4 v{T+2}, s[52:55], s41 offen lds
s_add_u32 m0, s44, {28672-64}
s_add_u32 s44, s44, 1024
buffer_load_dwordx4 v{T+2}, s[52:55], s41 offen offset:64 lds
s_add_u32 s41, s41, {16*896}
s_waitcnt vmcnt(2)
s_cmp_lt_u32 s44, s45
s_cbranch_scc1 X_wo
""")
    a(f"""
s_lshr_b32 s36, s3, 1
s_lshl1_add_u32 s36, s39, s36
s_and_b32 s44, s69, 3
s_lshl2_add_u32 s44, s68, s44
s_lshl_b32 s41, s36, 11
s_add_u32 s41, s41, {FY_OFF - FQ_OFF}
v_lshl_add_u32 v{T}, v0, 7, s41
s_lshl_b32 s41, s44, 7
s_add_u32 s41, s41, {224*128}
s_mov_b64 exec, 0x10000
v_mov_b32 v{T}, s41
s_lshl_b32 s41, s68, 15
s_add_u32 s41, s41, {FQ_OFF}
""")
    F.spin_global(a, "X_spy", T + 2, T, "s41", 0x1ffff)
    a(f"""
v_lshrrev_b32 v{T}, 2, v0
v_and_b32 v{T+1}, 3, v0
v_lshlrev_b32 v{T+1}, 4, v{T+1}
v_lshl_add_u32 v{T}, v{T}, 12, v{T+1}
s_and_b32 s45, s3, 1
s_lshl1_add_u32 s45, s44, s45
s_lshl_b32 s45, s45, 6
s_lshl_b32 s41, s36, 17
s_add_u32 s41, s41, s45
s_add_u32 s41, s41, {YT_OFF}
s_mul_i32 s45, s3, {F.YG_SLOT}
s_add_u32 m0, s45, {F.YG}
s_add_u32 s45, s41, {65536-1024}
buffer_load_dwordx4 v{T}, s[12:15], s41 offen sc1 lds
buffer_load_dwordx4 v{T}, s[12:15], s45 offen offset:1024 sc1 lds
v_lshlrev_b32 v{T}, 2, v0
s_lshl_b32 s41, s44, 8
s_add_u32 s41, s41, {G_OFF-2048}
buffer_load_dword v{T}, s[12:15], s41 offen offset:2048 sc1 lds
s_waitcnt vmcnt(0)
s_endpgm
""")

def gate(a):
    TK, Z = 8, 10
    T = 12
    X, W = 24, 52
    XT = 80
    RD = 16
    a(f"""
L_gate:
s_lshl_b32 s36, s35, 6
v_lshrrev_b32 v{T}, 3, v0
v_add_u32 v{T}, s36, v{T}
v_mul_u32_u24 v4, 896, v{T}
v_lshrrev_b32 v{T+1}, 4, v0
v_xor_b32 v{T+2}, v{T+1}, v0
v_and_b32 v{T+2}, 7, v{T+2}
v_lshl_add_u32 v5, v{T+2}, 4, v4
v_xor_b32 v{T+2}, 4, v{T+2}
v_lshl_add_u32 v6, v{T+2}, 4, v4
v_add_u32 v6, {8*896-1024}, v6
s_lshl_b32 s37, s3, 14
s_mov_b32 m0, s37
s_lshl_b32 s38, s3, 7
s_waitcnt lgkmcnt(0)
s_cmp_eq_u32 s3, 7
s_cbranch_scc1 T_nodma
""")
    for i in range(4):
        a(f"""
buffer_load_dwordx4 v5, s[4:7], s38 offen lds
buffer_load_dwordx4 v6, s[4:7], s38 offen offset:1024 lds
""")
        if i < 3: a(f"s_add_u32 m0, m0, 2048\ns_add_u32 s38, s38, {16*896}")
    a(f"""
T_nodma:
v_and_b32 v{T+2}, 7, v0
v_lshlrev_b32 v{T+2}, 4, v{T+2}
s_mul_i32 s38, s3, {8*896}
v_add3_u32 v{T+3}, v4, v{T+2}, s38
""")
    for i in range(7):
        a(f"global_load_dwordx4 {vr(X+4*i,4)}, v{T+3}, s[4:5] offset:{128*i}")
        a(f"global_load_dwordx4 {vr(W+4*i,4)}, v{T+2}, s[28:29] offset:{128*i}")
    F.token_issue(a, TK, Z)
    a(f"ds_write_b32 v{Z}, v{Z} offset:{F.MISC+8}")
    a(f"""
v_bfe_u32 v{T+2}, v0, 2, 2
v_lshl_add_u32 v{T+2}, v{T+1}, 4, v{T+2}
v_lshl_add_u32 v{T+2}, v{T+2}, 7, s37
v_lshrrev_b32 v{T+3}, 2, v0
v_xor_b32 v{T+3}, v{T+3}, v0
v_and_b32 v{T+3}, 2, v{T+3}
v_lshl_add_u32 v{T+2}, v{T+3}, 3, v{T+2}
v_and_b32 v{T+3}, 1, v0
v_lshl_add_u32 v{RD}, v{T+3}, 3, v{T+2}
v_xor_b32 v{RD+1}, 32, v{RD}
v_xor_b32 v{RD+2}, 64, v{RD}
v_xor_b32 v{RD+3}, 96, v{RD}
v_and_b32 v{T+2}, 15, v0
v_mul_u32_u24 v{T+2}, 144, v{T+2}
v_lshl_add_u32 v{T+2}, v{T+1}, 5, v{T+2}
v_add_u32 v20, s37, v{T+2}
v_lshrrev_b32 v{T+2}, 3, v0
v_and_b32 v{T+3}, 7, v0
v_lshlrev_b32 v{T+3}, 4, v{T+3}
v_lshl_add_u32 v22, v{T+2}, 12, v{T+3}
v_mul_u32_u24 v{T+2}, 144, v{T+2}
v_add3_u32 v21, v{T+2}, v{T+3}, s37
s_lshl_b32 s38, s3, 18
s_lshl_b32 s39, s35, 7
s_add_u32 s38, s38, s39
s_add_u32 s38, s38, {XT_OFF}
s_cmp_eq_u32 s3, 7
s_cbranch_scc1 T_g
s_waitcnt vmcnt(15)
""")
    for c in range(4):
        for t in range(4):
            a(f"ds_read_b64_tr_b16 {vr(XT+8*c+2*t,2)}, v{RD+(t^c)} offset:{512*t}")
        if c == 2: a("s_waitcnt lgkmcnt(4)")
    a("s_waitcnt lgkmcnt(0)")
    for c in range(4):
        for i in range(2):
            a(f"ds_write_b128 v20, {vr(XT+8*c+4*i,4)} offset:{16*144*c+16*i}")
    for i in range(8):
        a(f"ds_read_b128 {vr(XT+4*i,4)}, v21 offset:{8*144*i}")
        if i == 5: a("s_waitcnt lgkmcnt(6)")
    for i in range(8):
        a(f"s_waitcnt lgkmcnt({7-i})")
        a(f"buffer_store_dwordx4 {vr(XT+4*i,4)}, v22, s[12:15], s38 offen sc1")
        if i < 7: a("s_add_u32 s38, s38, 32768")
    a("T_g:\nv_mov_b32 v23, 0\ns_waitcnt vmcnt(8)\ns_cmp_lg_u32 s3, 7\ns_cbranch_scc1 T_g2\ns_waitcnt vmcnt(0)\nT_g2:")
    for i in range(28):
        a(f"v_dot2c_f32_bf16 v23, v{X+i}, v{W+i}")
    a(f"""
s_nop 2
v_add_f32_dpp v23, v23, v23 quad_perm:[1,0,3,2] row_mask:0xf bank_mask:0xf
s_nop 1
v_add_f32_dpp v23, v23, v23 quad_perm:[2,3,0,1] row_mask:0xf bank_mask:0xf
s_nop 1
v_add_f32_dpp v23, v23, v23 row_half_mirror row_mask:0xf bank_mask:0xf
v_mul_f32 v23, {hex(f2u(-LOG2E))}, v23
v_exp_f32 v23, v23
v_lshlrev_b32 v{T}, 2, v{T}
v_add_f32 v23, 1.0, v23
v_rcp_f32 v23, v23
s_lshl_b32 s36, s3, 5
s_add_u32 s36, s36, {G_OFF}
s_mov_b32 exec_lo, 0x01010101
s_mov_b32 exec_hi, 0x01010101
buffer_store_dword v23, v{T}, s[12:15], s36 offen sc1
s_mov_b64 exec, -1
""")
    F.token_finish(a, "T_tok", TK, Z)
    a(f"""
s_waitcnt vmcnt(0) lgkmcnt(0)
;STAMP 0
s_barrier
s_mov_b32 s51, 0
s_cmp_lt_u32 s3, 4
s_cbranch_scc1 L_attn
s_sub_u32 s3, s3, 4
s_cmp_lg_u32 s3, 0
s_cbranch_scc1 T_nopub
s_add_u32 s41, s61, {FQ_OFF}
""")
    F.publish8(a, TK, T, "s41")
    a("T_nopub:\ns_cmp_lg_u32 s3, 1\ns_cbranch_scc1 X_tail_wo")
    ticket(a, T, T + 1)
    a("s_waitcnt vmcnt(0)")
    put_role(a, T, Z)
    a("s_branch X_tail_wo")
```

```python
import sys, os, re
from asmlib import *
from layout import *
import gen as G
import fused
def build():
    h = G.header()
    h += f"; @launch grid=(256,1,1) block=(512,1,1) lds={fused.LDS_BYTES}\n"
    h += '.amdgcn_target "amdgcn-amd-amdhsa--gfx950"\n.text\n'
    a = Asm()
    a(f".globl {fused.NAME}\n.type {fused.NAME},@function")
    fused.gen(a)
    t = a.text()
    VAR = os.environ.get("VAR", "")
    if "kgnolds" in VAR:
        i0 = t.index("X_pass:"); i1 = t.index("s_cbranch_scc1 X_pass")
        t = t[:i0] + re.sub(r".*ds_(read|write).*\n", "", t[i0:i1]) + t[i1:]
    if "kgnowr" in VAR:
        i0 = t.index("X_pass:"); i1 = t.index("s_cbranch_scc1 X_pass")
        t = t[:i0] + re.sub(r".*ds_write.*\n", "", t[i0:i1]) + t[i1:]
    if "kgnord" in VAR:
        i0 = t.index("X_pass:"); i1 = t.index("s_cbranch_scc1 X_pass")
        t = t[:i0] + re.sub(r".*ds_read.*\n", "", t[i0:i1]) + t[i1:]
    if "kgw32" in VAR:
        t = t.replace("X_pass:\n", "X_pass:\n    v_lshl_add_u32 v200, v0, 2, s43\n").replace("ds_write_addtid_b32 ", "ds_write_b32 v200, ")
    if "kgnomfma" in VAR:
        i0 = t.index("X_pass:"); i1 = t.index("s_cbranch_scc1 X_pass")
        t = t[:i0] + re.sub(r".*v_mfma.*\n", "", t[i0:i1]) + t[i1:]
    if "gnodma" in VAR:
        i0 = t.index("G_loop:"); i1 = t.index("s_cbranch_scc1 G_loop")
        t = t[:i0] + re.sub(r".*buffer_load.*\n", "", t[i0:i1]) + t[i1:]
    if "gnords" in VAR:
        i0 = t.index("G_loop:"); i1 = t.index("s_cbranch_scc1 G_loop")
        t = t[:i0] + re.sub(r".*ds_read.*\n", "", t[i0:i1]) + t[i1:]
    if "gnomfma" in VAR:
        i0 = t.index("G_loop:"); i1 = t.index("s_cbranch_scc1 G_loop")
        t = t[:i0] + re.sub(r".*v_mfma.*\n", "", t[i0:i1]) + t[i1:]
    if "noaux" in VAR:
        t = t.replace(";STAMP 6\n    ds_write_addtid", "    s_endpgm\n    ds_write_addtid", 1).replace("s_cbranch_scc1 O_noy", "s_branch O_noy")
    if "prio0" in VAR: t = t.replace("s_setprio 2", "s_setprio 0")
    if "noslow" in VAR: t = t.replace("s_cbranch_vccnz L_slow", "s_nop 0")
    t = G.instrument(t, fused.NAME, 0) if G.STAMP else re.sub(r"^\s*;STAMP.*\n", "", t, flags=re.M)
    check_hazards(t)
    return h + t + '.section .rodata,"a"\n' + kd(fused.NAME, fused.VGPRS, extra="  .amdhsa_ieee_mode 0\n")
out = sys.argv[1] if len(sys.argv) > 1 else f"cdna_kernels/{G.NAME}.s"
open(out, "w").write(build())
```

```python
import sys, os, re
from asmlib import *
from layout import *
import gen as G
import fused
def build():
    h = G.header()
    h += f"; @launch grid=(256,1,1) block=(512,1,1) lds={fused.LDS_BYTES}\n"
    h += '.amdgcn_target "amdgcn-amd-amdhsa--gfx950"\n.text\n'
    a = Asm()
    a(f".globl {fused.NAME}\n.type {fused.NAME},@function")
    fused.gen(a)
    t = a.text()
    VAR = os.environ.get("VAR", "")
    if "kgnolds" in VAR:
        i0 = t.index("X_pass:"); i1 = t.index("s_cbranch_scc1 X_pass")
        t = t[:i0] + re.sub(r".*ds_(read|write).*\n", "", t[i0:i1]) + t[i1:]
    if "kgnowr" in VAR:
        i0 = t.index("X_pass:"); i1 = t.index("s_cbranch_scc1 X_pass")
        t = t[:i0] + re.sub(r".*ds_write.*\n", "", t[i0:i1]) + t[i1:]
    if "kgnord" in VAR:
        i0 = t.index("X_pass:"); i1 = t.index("s_cbranch_scc1 X_pass")
        t = t[:i0] + re.sub(r".*ds_read.*\n", "", t[i0:i1]) + t[i1:]
    if "kgw32" in VAR:
        t = t.replace("X_pass:\n", "X_pass:\n    v_lshl_add_u32 v200, v0, 2, s43\n").replace("ds_write_addtid_b32 ", "ds_write_b32 v200, ")
    if "kgnomfma" in VAR:
        i0 = t.index("X_pass:"); i1 = t.index("s_cbranch_scc1 X_pass")
        t = t[:i0] + re.sub(r".*v_mfma.*\n", "", t[i0:i1]) + t[i1:]
    if "gnodma" in VAR:
        i0 = t.index("G_loop:"); i1 = t.index("s_cbranch_scc1 G_loop")
        t = t[:i0] + re.sub(r".*buffer_load.*\n", "", t[i0:i1]) + t[i1:]
    if "gnords" in VAR:
        i0 = t.index("G_loop:"); i1 = t.index("s_cbranch_scc1 G_loop")
        t = t[:i0] + re.sub(r".*ds_read.*\n", "", t[i0:i1]) + t[i1:]
    if "gnomfma" in VAR:
        i0 = t.index("G_loop:"); i1 = t.index("s_cbranch_scc1 G_loop")
        t = t[:i0] + re.sub(r".*v_mfma.*\n", "", t[i0:i1]) + t[i1:]
    if "noaux" in VAR:
        t = t.replace(";STAMP 6\n    ds_write_addtid", "    s_endpgm\n    ds_write_addtid", 1).replace("s_cbranch_scc1 O_noy", "s_branch O_noy")
    if "prio0" in VAR: t = t.replace("s_setprio 2", "s_setprio 0")
    if "noslow" in VAR: t = t.replace("s_cbranch_vccnz L_slow", "s_nop 0")
    if os.environ.get("DBGT"):
        idx = {"1": 0, "2": 1, "3": 2, "4": 3, "5": 4, "7": 5, "8": 6}
        i1 = t.index("L_aux:")
        head = t[:i1]
        def st(m):
            k = m.group(1)
            return f"    s_memrealtime s[88:89]\n    s_waitcnt lgkmcnt(0)\n    s_mov_b32 s{70+idx[k]}, s88\n" if k in idx else ""
        head = re.sub(r"^\s*;STAMP (\d+).*\n", st, head, flags=re.M)
        fin = "    s_waitcnt vmcnt(0)\n    s_memrealtime s[88:89]\n    s_waitcnt lgkmcnt(0)\n    s_mov_b32 s77, s88\n    s_mov_b32 s78, s64\n    s_cmp_lg_u32 s3, 0\n    s_cbranch_scc1 L_end\n    s_cmp_eq_u32 s51, 0\n    s_cbranch_scc1 L_end\n    s_mov_b64 exec, 1\n    v_mov_b32 v0, 0\n"
        for k in range(9):
            fin += f"    s_sub_u32 s80, s{70+k}, s62\n    s_add_u32 s80, s80, 100\n    v_mov_b32 v1, s80\n    global_atomic_umax v0, v1, s[48:49] offset:{16+4*k} sc1\n"
        j = head.rindex("    s_endpgm\n")
        head = head[:j] + fin + head[j:]
        t = head + t[i1:]
    t = G.instrument(t, fused.NAME, 0) if G.STAMP else re.sub(r"^\s*;STAMP.*\n", "", t, flags=re.M)
    check_hazards(t)
    return h + t + '.section .rodata,"a"\n' + kd(fused.NAME, fused.VGPRS, extra="  .amdhsa_ieee_mode 0\n")
out = sys.argv[1] if len(sys.argv) > 1 else f"cdna_kernels/{G.NAME}.s"
open(out, "w").write(build())
```

```python
from asmlib import *
from layout import *
import os
NAME = "gated_mix__mha_block__ssm_conv_s4d__prompt_kernel"
SPIN = 400000
VAR = os.environ.get("VAR", "")
CH_AREA = 30720
TB0 = 22016; TAB = TB0 + 32; TABK = 13; SUM = 8448 + 32; CPY = 0; KG_AREA = 8704; XP = 17408
YG = 49152; YG_SLOT = 2304
MISC = 61440
RING = 65536
WO_B = 65536; VR = 122880; VSLOT = 2368; VWAVE = 4 * VSLOT
LDS_BYTES = 163840
VGPRS = 256
SL = 272

def spin_global(a, lab, dst2, vaddr, soff, mask, cnt="s60"):
    lo, hi = mask & 0xffffffff, mask >> 32
    a(f"""
s_mov_b32 {cnt}, 0
s_mov_b32 exec_lo, {hex(lo)}
s_mov_b32 exec_hi, {hex(hi)}
{lab}:
buffer_load_dwordx2 {vr(dst2,2)}, v{vaddr}, s[12:15], {soff} offen sc1
s_add_u32 {cnt}, {cnt}, 1
s_cmp_gt_u32 {cnt}, {SPIN}
s_cbranch_scc1 L_end
s_waitcnt vmcnt(0)
v_cmp_ne_u64 vcc, {vr(dst2,2)}, s[62:63]
s_and_b64 exec, exec, vcc
s_cbranch_scc1 {lab}
s_mov_b64 exec, -1
""")

def spin_lds(a, lab, vaddr, off, val, tmp, cnt="s60"):
    a(f"""
s_mov_b32 {cnt}, 0
{lab}:
ds_read_b32 v{tmp}, v{vaddr} offset:{off}
s_add_u32 {cnt}, {cnt}, 1
s_cmp_gt_u32 {cnt}, {SPIN*8}
s_cbranch_scc1 L_end
s_waitcnt lgkmcnt(0)
v_cmp_ne_u32 vcc, {val}, v{tmp}
s_cbranch_vccnz {lab}
""")

def token_issue(a, t2, z):
    a(f"v_mov_b32 v{z}, 0\nglobal_load_dwordx2 {vr(t2,2)}, v{z}, s[48:49] sc1")

def token_finish(a, lab, t2, z):
    a(f"""
s_mov_b32 s60, 0
{lab}:
v_readfirstlane_b32 s62, v{t2}
v_readfirstlane_b32 s63, v{t2+1}
s_cmp_lg_u64 s[62:63], 0
s_cbranch_scc1 {lab}_ok
global_load_dwordx2 {vr(t2,2)}, v{z}, s[48:49] sc1
s_add_u32 s60, s60, 1
s_cmp_gt_u32 s60, {SPIN}
s_cbranch_scc1 L_end
s_waitcnt vmcnt(0)
s_branch {lab}
{lab}_ok:
""")

def publish8(a, t2, tmp, soff):
    if "pubfull" not in VAR:
        a(f"""
v_lshlrev_b32 v{tmp}, 15, v0
s_mov_b64 exec, 0xff
buffer_store_dwordx2 {vr(t2,2)}, v{tmp}, s[12:15], {soff} offen sc1
s_mov_b64 exec, -1
""")
        return
    a(f"""
v_lshrrev_b32 v{tmp}, 3, v0
v_mul_u32_u24 v{tmp}, {32768-128}, v{tmp}
v_add_u32 v{tmp}, v{tmp}, v1
buffer_store_dwordx4 {vr(t2,4)}, v{tmp}, s[12:15], {soff} offen sc1
""")

def get_role(a, lab, z, tmp):
    a(f"""
s_mov_b32 s60, 0
{lab}:
ds_read_b32 v{tmp}, v{z} offset:{MISC+8}
s_add_u32 s60, s60, 1
s_cmp_gt_u32 s60, {SPIN*8}
s_cbranch_scc1 L_end
s_waitcnt lgkmcnt(0)
v_readfirstlane_b32 s69, v{tmp}
s_cmp_eq_u32 s69, 0
s_cbranch_scc1 {lab}
s_sub_u32 s69, s69, 1
""")

def gen(a):
    a(f"""
.p2align 8
{NAME}:
s_cmp_ge_u32 s2, 256
s_cbranch_scc1 L_end
s_load_dwordx2 s[4:5], s[0:1], 0
s_load_dwordx2 s[8:9], s[0:1], 8
s_load_dwordx2 s[12:13], s[0:1], 104
s_load_dwordx16 s[16:31], s[0:1], 32
s_load_dwordx2 s[48:49], s[0:1], 96
s_load_dwordx2 s[52:53], s[0:1], 16
s_load_dwordx2 s[56:57], s[0:1], 88
s_memrealtime s[64:65]
v_lshrrev_b32 v1, 6, v0
v_and_b32 v0, 63, v0
v_readfirstlane_b32 s3, v1
s_mov_b32 s6, {2048*896}
s_mov_b32 s7, 0x20000
s_mov_b32 s10, {448*2688}
s_mov_b32 s11, 0x20000
s_mov_b32 s14, {WS_BYTES}
s_mov_b32 s15, 0x20000
s_mov_b32 s54, {448*896}
s_mov_b32 s55, 0x20000
s_mov_b32 s58, {2048*896}
s_mov_b32 s59, 0x20000
v_lshlrev_b32 v1, 4, v0
v_and_b32 v2, 31, v0
v_lshrrev_b32 v3, 5, v0
s_bfe_u32 s32, s2, 0x20003
s_and_b32 s34, s2, 4
s_add_u32 s34, s34, s32
s_lshr_b32 s33, s2, 5
s_and_b32 s35, s2, 3
s_lshl3_add_u32 s35, s35, s33
s_lshl_b32 s61, s34, 5
s_add_u32 s61, s61, s35
s_lshl_b32 s61, s61, 7
s_getreg_b32 s68, hwreg(HW_REG_XCC_ID, 0, 3)
s_cmp_eq_u32 s34, 7
s_cbranch_scc1 L_gate
s_cmp_ge_u32 s3, 4
s_cbranch_scc1 L_aux
""")
    gemm(a)
    attn(a)
    outproj(a)
    aux(a)
    gate(a)
    slow(a)
    a("L_end:\ns_endpgm\nL_code_end:")

def gemm(a):
    XA0, XA1, WA = 4, 5, 6
    XR, WR = 8, 12
    XC, WC = 14, 18
    T0, T1, T2 = 20, 21, 22
    FW, FP, FV, FI = 13, 19, 23, 20
    FA, FB = 24, 40
    ACC = 56
    a(f"""
s_setprio 2
v_lshrrev_b32 v{T0}, 3, v0
s_lshl_b32 s36, s35, 6
s_lshl_b32 s37, s3, 4
s_add_u32 s36, s36, s37
v_add_u32 v{T0}, s36, v{T0}
v_mul_u32_u24 v{T0}, 896, v{T0}
v_lshrrev_b32 v{T1}, 4, v0
v_xor_b32 v{T1}, v{T1}, v0
v_and_b32 v{T1}, 7, v{T1}
v_lshl_add_u32 v{XA0}, v{T1}, 4, v{T0}
v_xor_b32 v{T1}, 4, v{T1}
v_lshl_add_u32 v{XA1}, v{T1}, 4, v{T0}
v_add_u32 v{XA1}, {8*896 - 1024}, v{XA1}
v_lshrrev_b32 v{T0}, 2, v0
v_add_u32 v{T0}, s37, v{T0}
v_mul_u32_u24 v{T0}, 2688, v{T0}
v_and_b32 v{T1}, 3, v0
v_lshl_add_u32 v{WA}, v{T1}, 4, v{T0}
; first sigma = ((r>>2) + 2*(r&3)) % 7
s_lshl1_add_u32 s39, s32, s33
s_cmp_ge_u32 s39, 7
s_cselect_b32 s38, 7, 0
s_sub_u32 s39, s39, s38
{"s_mov_b32 s39, 0" if "rot0" in VAR else ""}
{"s_and_b32 s39, s33, 1" if "rot2" in VAR else ""}
{"s_mul_i32 s39, s39, 3" if "rot2" in VAR else ""}
s_mul_i32 s40, s34, 384
s_lshl_b32 s41, s3, 11
s_add_u32 s41, s41, {RING}
s_mov_b32 s38, s41
s_lshl_b32 s42, s3, 10
s_sub_u32 s42, {8192}, s42
s_mov_b32 s43, 0
s_lshl_b32 s46, s39, 7
s_mul_i32 s47, s39, {64*2688}
s_add_u32 s47, s47, s40
s_waitcnt lgkmcnt(0)
""")
    if "pf" in VAR:
        a(f"""
v_lshlrev_b32 v{T0}, 7, v0
s_cmp_eq_u32 s3, 0
s_cbranch_scc0 G_pf1
s_lshl_b32 s36, s61, 6
buffer_load_dword v{T2}, v{T0}, s[4:7], s36 offen
G_pf1:
s_cmp_eq_u32 s3, 1
s_cbranch_scc0 G_pf2
s_mul_i32 s36, s61, 42
buffer_load_dword v{T2}, v{T0}, s[8:11], s36 offen
G_pf2:
""")
        if "pfw" in VAR: a("s_waitcnt vmcnt(0)")
    a("s_barrier")
    if "pfw" in VAR: a(";STAMP 2")
    dma = [f"buffer_load_dwordx4 v{XA0}, s[4:7], s46 offen lds",
           f"buffer_load_dwordx4 v{XA1}, s[4:7], s46 offen offset:1024 lds"] + \
          [f"buffer_load_dwordx4 v{WA}, s[8:11], s47 offen offset:{64*ct} lds" for ct in range(6)]
    pre = ["s_mov_b32 m0, s41", None, "s_add_u32 m0, s41, s42"] + [f"s_add_u32 m0, m0, {4096-64}"] * 5
    adv = ["s_add_u32 s46, s46, 128", f"s_add_u32 s47, s47, {64*2688}", "s_cmp_eq_u32 s46, 896",
           "s_cselect_b32 s46, 0, s46", "s_cselect_b32 s47, s40, s47"]
    a("G_pro:")
    for p, d in zip(pre, dma):
        if p: a(p + "\ns_nop 0")
        a(d)
    a("\n".join(adv))
    a(f"""
s_add_u32 s41, s41, 32768
s_add_u32 s43, s43, 1
s_cmp_lt_u32 s43, {3 if "pro3" in VAR else 2}
s_cbranch_scc1 G_pro
;STAMP 0
s_and_b32 s44, s3, 1
s_lshr_b32 s45, s3, 1
v_bfe_u32 v{T2}, v0, 1, 3
v_xor_b32 v{T2}, v{T2}, v3
v_lshlrev_b32 v{T2}, 4, v{T2}
v_lshl_add_u32 v{T2}, v2, 7, v{T2}
s_lshl_b32 s36, s44, 12
s_add_u32 s36, s36, {RING}
v_add_u32 v{XR}, s36, v{T2}
v_xor_b32 v{XR+1}, 32, v{XR}
v_xor_b32 v{XR+2}, 64, v{XR}
v_xor_b32 v{XR+3}, 96, v{XR}
v_bfe_u32 v{T0}, v0, 2, 2
v_lshl_add_u32 v{T0}, v3, 3, v{T0}
v_lshlrev_b32 v{T0}, 6, v{T0}
v_and_b32 v{T2}, 16, v0
v_lshl_add_u32 v{T0}, v{T2}, 1, v{T0}
v_lshl_add_u32 v7, v{T1}, 3, v{T0}
s_mul_i32 s36, s45, 12288
s_add_u32 s36, s36, {RING+8192}
v_add_u32 v{WR}, s36, v7
""")
    for i in range(5):
        a(f"v_mov_b32 v{XC+i}, v{XR+i}")
    for i in list(range(4)) + list(range(12, 80)):
        a(f"v_mov_b32 v{FA+i}, 0")
    a("s_mov_b32 s43, 0\ns_mov_b32 s50, 0")
    rX = lambda u, F: [f"ds_read_b128 {vr(F,4)}, v{XC+u}"]
    rW = lambda u, F, c: [f"ds_read_b64_tr_b16 {vr(F+4+4*c+2*t,2)}, v{WC} offset:{c*4096+u*1024+t*256}" for t in range(2)]
    def mf(F, c):
        a(f"v_mfma_f32_32x32x16_bf16 {vr(ACC+16*c,16)}, {vr(F+4+4*c,4)}, {vr(F,4)}, {vr(ACC+16*c,16)}")
    seq = [(FA, 2), (FB, 0), (FB, 1), (FB, 2), (FA, 0), (FA, 1), (FA, 2), (FB, 0), (FB, 1), (FB, 2), (FA, 0), (FA, 1)]
    def body(with_dma):
        side = [rX(0, FA) + rW(0, FA, 0) + rW(0, FA, 1),
                rW(0, FA, 2) + rW(1, FB, 0), rW(1, FB, 1), rW(1, FB, 2) + rX(1, FB),
                rW(2, FA, 0), rW(2, FA, 1), rW(2, FA, 2) + rX(2, FA),
                rW(3, FB, 0), rW(3, FB, 1), rW(3, FB, 2) + rX(3, FB), [], []]
        side[0].insert(0, "s_add_u32 s43, s43, 1")
        if with_dma:
            for i in range(8):
                if pre[i]: side[1 + i].insert(0, pre[i])
                side[1 + i].append(dma[i])
            side[4] += ["s_add_u32 s41, s38, s50", "s_add_u32 s50, s50, 32768"]
            side[5] += ["s_cmp_eq_u32 s50, 98304", "s_cselect_b32 s50, 0, s50"]
            side[7] += [adv[0]]
            side[9] = [adv[1]] + side[9] + adv[2:]
            side[10] = [f"v_add_u32 v{XC+i}, s50, v{XR+i}" for i in range(5)]
            side[11] = ["s_cmp_lt_u32 s43, 5"]
        else:
            side[10] = [f"v_mov_b32 v{XC+i}, v{XR+i}" for i in range(5)]
            side[11] = ["s_cmp_lt_u32 s43, 7"]
        a("s_barrier\n;STAMPI")
        for n, (F, c) in enumerate(seq):
            if n in (4, 7, 10): a("s_waitcnt lgkmcnt(7)")
            mf(F, c)
            for x in side[n]: a(x)
    a("s_waitcnt vmcnt(8)\n.p2align 3\nG_loop:")
    body(True)
    a("s_waitcnt vmcnt(8) lgkmcnt(0)\ns_cbranch_scc1 G_loop\nG_loop2:")
    body(False)
    a("s_waitcnt vmcnt(0) lgkmcnt(0)\ns_cbranch_scc1 G_loop2")
    if "nob8" not in VAR: a("s_barrier")
    mf(FA, 2)
    for c in range(3): mf(FB, c)
    TK, Z = 8, 10
    a(f"""
""")
    token_issue(a, TK, Z)
    a(f"""
v_mul_u32_u24 v{T0}, {512+64}, v3
v_lshlrev_b32 v{T1}, 4, v2
v_xor_b32 v{XC}, v{T0}, v{T1}
v_xor_b32 v{XC+1}, 128, v{XC}
s_lshl1_add_u32 s36, s35, s44
s_mul_i32 s36, s36, {QKV_T}
s_lshl1_add_u32 s37, s34, s45
s_mul_i32 s37, s37, 3
s_lshl_b32 s38, s37, 11
s_add_u32 s36, s36, s38
""")
    for c in range(3):
        A = ACC + 16*c
        a(f"s_cmp_lt_u32 s37, {14-c}\ns_cbranch_scc0 G_noscale{c}\ns_mov_b32 s38, {hex(f2u(QSCALE))}")
        for i in range(8):
            a(f"v_pk_mul_f32 {vr(A+2*i,2)}, {vr(A+2*i,2)}, s[38:39] op_sel_hi:[1,0]")
        a(f"G_noscale{c}:")
        for i in range(8):
            a(f"v_cvt_pk_bf16_f32 v{A+i}, v{A+2*i}, v{A+2*i+1}")
        a("s_nop 0")
        for p in range(2):
            a(f"v_permlane32_swap_b32 v{A+4*p}, v{A+4*p+2}\nv_permlane32_swap_b32 v{A+4*p+1}, v{A+4*p+3}")
        for p in range(2):
            a(f"buffer_store_dwordx4 {vr(A+4*p,4)}, v{XC+p}, s[12:15], s36 offen offset:{1024*p} sc1")
        if c < 2: a("s_add_u32 s36, s36, 2048")
    a(";STAMP 10")

KA, VA, TT = 4, 12, 16
VF, P, Q, S, O, KF = 24, 32, 40, [72, 88], 104, 168
NM = 120
OK_ = O + 48
TK, Z = 8, 10
VS = 6
PT = 14

def rdV(a, slot, u):
    for t in range(2):
        a(f"ds_read_b64_tr_b16 {vr(VF+4*u+2*t,2)}, v{VA+t} offset:{slot*VSLOT+256*u}")
def qk(a, Sx, kb, q, u, c0="0"):
    c = c0 if u == 0 else vr(Sx, 16)
    a(f"v_mfma_f32_32x32x16_bf16 {vr(Sx,16)}, {vr(KF+8*kb+4*u,4)}, {vr(Q+8*q+4*u,4)}, {c}")
def pv(a, q, u):
    a(f"v_mfma_f32_32x32x16_bf16 {vr(O+16*q,16)}, {vr(VF+4*u,4)}, {vr(P+4*u,4)}, {vr(O+16*q,16)}")

def attn(a):
    T = TT
    a(f"""
v_mov_b32 v{T+1}, 1
s_waitcnt vmcnt(0)
;STAMP 2
s_mov_b64 exec, 1
ds_add_rtn_u32 v{T+1}, v{Z}, v{T+1} offset:{MISC}
s_mov_b64 exec, -1
""")
    token_finish(a, "A_tok", TK, Z)
    a(f"""
s_add_u32 s41, s61, {FQ_OFF}
s_waitcnt lgkmcnt(0)
v_readfirstlane_b32 s23, v{T+1}
s_cmp_lg_u32 s23, 3
s_cbranch_scc1 A_nopub
""")
    publish8(a, TK, T + 1, "s41")
    a("A_nopub:\ns_setprio 0\n;STAMP 11")
    a("L_attn:")
    for i in range(64):
        a(f"v_mov_b32 v{O+i}, 0")
    for i in range(4):
        a(f"v_mov_b32 v{P+4+i}, 0\nv_mov_b32 v{VF+4+i}, 0")
        for k in (0, 1, 6, 7): a(f"v_mov_b32 v{Q+8*i+k}, 0")
    get_role(a, "A_role", Z, T)
    a(f"""
s_and_b32 s36, s69, 15
s_and_b32 s39, s69, 1
s_lshr_b32 s37, s69, 4
s_mul_i32 s38, s36, 7
s_lshr_b32 s38, s38, 1
v_lshlrev_b32 v{T}, 4, v2
v_add_u32 v{T+1}, s38, v3
v_and_b32 v{T+1}, 3, v{T+1}
v_lshlrev_b32 v{T+1}, 6, v{T+1}
v_xor_b32 v{T+1}, v{T+1}, v{T}
v_lshl_add_u32 v{KA}, v3, 9, v{T+1}
v_xor_b32 v{KA+1}, 128, v{KA}
s_mul_i32 s40, s3, {VWAVE}
s_add_u32 s40, s40, {VR}
v_bfe_u32 v{T}, v0, 4, 1
v_bfe_u32 v{T+1}, v0, 1, 1
v_lshl_add_u32 v{T}, v{T}, 1, v{T+1}
v_bfe_u32 v{T+1}, v0, 2, 2
v_lshl_add_u32 v{T+1}, v3, 2, v{T+1}
v_lshlrev_b32 v{T+1}, 4, v{T+1}
v_add_u32 v{T+2}, s38, v{T}
v_and_b32 v{T+2}, 3, v{T+2}
v_lshlrev_b32 v{T+2}, 6, v{T+2}
v_xor_b32 v{T+1}, v{T+1}, v{T+2}
v_lshl_add_u32 v{T+1}, v{T}, 9, v{T+1}
v_and_b32 v{T+2}, 1, v0
v_lshl_add_u32 v{T+1}, v{T+2}, 3, v{T+1}
v_xor_b32 v{T+2}, 128, v{T+1}
s_movk_i32 s41, 0x1111
s_cmp_eq_u32 s39, 0
s_cselect_b32 exec_lo, 0x88880000, s41
s_mov_b32 exec_hi, exec_lo
v_mov_b32 v{T+1}, 2048
v_mov_b32 v{T+2}, 2048
s_mov_b64 exec, -1
v_add_u32 v{VA}, s40, v{T+1}
v_add_u32 v{VA+1}, s40, v{T+2}
v_lshrrev_b32 v{T}, 1, v0
v_mul_u32_u24 v{T}, {VSLOT}, v{T}
v_and_b32 v{T+1}, 1, v0
v_lshl_add_u32 v{T}, v{T+1}, 8, v{T}
v_add_u32 v{T}, s40, v{T}
v_mov_b32 v{T+2}, 0x3f80
v_mov_b32 v{T+3}, 0
s_mov_b64 exec, 0xff
ds_write_b64 v{T}, {vr(T+2,2)} offset:2048
s_mov_b64 exec, -1
v_bfe_u32 v{T}, v0, 4, 1
v_add_u32 v{T}, 1, v{T}
s_lshl_b32 s41, s3, 3
v_and_b32 v{T+1}, 7, v0
v_add_u32 v{T+1}, s41, v{T+1}
s_lshl_b32 s41, s37, 1
s_mov_b32 exec_lo, 0
v_mov_b32 v{T}, 0
v_and_b32 v{T+1}, 1, v0
v_add_u32 v{T+1}, s41, v{T+1}
s_mov_b32 exec_lo, -1
v_mul_u32_u24 v{T}, 56, v{T}
v_bfe_u32 v{T+2}, v0, 3, 1
v_mad_u32_u24 v{T}, v{T+2}, 3, v{T}
v_add_u32 v{T}, s38, v{T}
v_mul_u32_u24 v{T}, 171, v{T}
v_lshrrev_b32 v{T}, 12, v{T}
v_lshl_add_u32 v{T}, v{T}, 5, v{T+1}
v_lshlrev_b32 v{T}, 7, v{T}
s_mul_i32 s16, s3, {16*QKV_T}
s_add_u32 s41, s38, 56
s_lshl_b32 s41, s41, 9
s_add_u32 s16, s16, s41
s_add_u32 s17, s16, {16*QKV_T}
s_mov_b32 s28, s16
s_and_b32 s18, s68, 3
s_mul_i32 s18, s18, {4*QKV_T}
s_add_u32 s16, s16, s18
v_add_u32 v{VS}, {56*512}, v1
s_mov_b32 s18, s16
s_lshl2_add_u32 s42, s37, s3
s_lshl4_add_u32 s42, s42, s36
s_lshl_b32 s42, s42, 11
s_add_u32 s42, s42, {O_OFF}
s_lshl2_add_u32 s21, s69, s3
s_lshl_b32 s21, s21, 7
s_add_u32 s21, s21, {FO_OFF}
v_mov_b32 v{PT}, s21
s_mov_b64 exec, 0xffff
v_lshl_add_u32 v{PT}, v0, 7, s42
s_mov_b64 exec, -1
s_lshl_b32 s20, s38, 9
""")
    for q in range(4):
        a(f"""
s_add_u32 s41, s3, {q+1}
s_and_b32 s41, s41, 3
s_lshl2_add_u32 s41, s37, s41
s_mul_i32 s41, s41, {QKV_T}
s_add_u32 s{24+q}, s41, s20
""")
    ldK = lambda kb: [f"buffer_load_dwordx4 {vr(KF+8*kb,4)}, v{KA}, s[12:15], s16 offen sc1",
                      f"buffer_load_dwordx4 {vr(KF+8*kb+4,4)}, v{KA+1}, s[12:15], s16 offen offset:1024 sc1"]
    ldV = [f"buffer_load_dwordx4 v{VS}, s[12:15], s16 offen sc1 lds", f"buffer_load_dwordx4 v{VS}, s[12:15], s16 offen offset:1024 sc1 lds"]
    preV = lambda slot: [f"s_add_u32 m0, s40, {slot*VSLOT}"]
    adv = [f"s_add_u32 s16, s16, {QKV_T}"]
    wrap = ["s_cmp_eq_u32 s16, s17", "s_cselect_b32 s16, s28, s16", "s_cmp_eq_u32 s16, s18", "s_cselect_b32 s16, 0x70000000, s16"]
    for x in preV(0): a(x)
    a(f"""
s_lshl_b32 s22, s68, 15
s_add_u32 s22, s22, {FQ_OFF}
""")
    a(";STAMP 0")
    spin_global(a, "A_spin", T + 2, T, "s22", 0x303ffffffff)
    a(";STAMP 3")
    if "cnt" in VAR: a(";STAMPV 0 s60\n;STAMPV 1 s69")
    for x in ldK(0): a(x)
    def ldQ(q, odd):
        r = Q + 8*q
        if not odd:
            a(f"""
buffer_load_dwordx4 {vr(r,4)}, v{KA}, s[12:15], s{24+q} offen sc1
s_mov_b32 exec_hi, 0
buffer_load_dwordx4 {vr(r+4,4)}, v{KA+1}, s[12:15], s{24+q} offen offset:1024 sc1
s_not_b64 exec, exec
buffer_load_dwordx2 {vr(r+4,2)}, v{KA+1}, s[12:15], s{24+q} offen offset:1024 sc1
s_mov_b32 exec_lo, -1
""")
        else:
            a(f"""
buffer_load_dwordx4 {vr(r+4,4)}, v{KA+1}, s[12:15], s{24+q} offen offset:1024 sc1
s_mov_b32 exec_hi, 0
buffer_load_dwordx2 {vr(r+2,2)}, v{KA}, s[12:15], s{24+q} offen offset:8 sc1
s_not_b64 exec, exec
buffer_load_dwordx4 {vr(r,4)}, v{KA}, s[12:15], s{24+q} offen sc1
s_mov_b32 exec_lo, -1
""")
    a("s_cmp_eq_u32 s39, 0\ns_cbranch_scc0 A_odd")
    for odd in (0, 1):
        if odd: a("s_branch A_z\nA_odd:")
        ldQ(0, odd)
        for x in ldV: a(x)
        for q in range(1, 4): ldQ(q, odd)
    a("A_z:")
    for x in adv: a(x)
    for x in preV(1) + ldK(1) + ldV + adv: a(x)
    a("s_mov_b32 s43, 0\ns_waitcnt vmcnt(15)\n;STAMP 4")
    qk(a, S[0], 0, 0, 0); qk(a, S[0], 0, 0, 1)
    for t in range(2, 4):
        for x in preV(t) + ldK(t) + ldV + adv: a(x)
    for x in wrap[:2]: a(x)
    for q in range(3):
        a(f"s_add_u32 s41, s3, {q+1}\ns_and_b32 s41, s41, 3\ns_mul_i32 s41, s41, 12288\nv_add_u32 v{T+q}, s41, v1")
    a("s_waitcnt vmcnt(21) lgkmcnt(0)")
    rdV(a, 0, 0)
    a("s_barrier\n;STAMP 1")
    a(".p2align 3\nA_loop:")
    for t in range(4):
        side = [[[] for _ in range(4)] for _ in range(4)]
        side[0][0] = (["s_waitcnt vmcnt(18)"] if t == 0 else []) + [("V", t, 1)]
        side[0][1] = preV(t)
        side[0][2] = ["s_waitcnt lgkmcnt(2)"]
        side[0][3] = ["s_waitcnt lgkmcnt(0)"]
        side[1][1] = [ldV[0]]
        side[1][2] = [ldV[1]]
        side[2][2] = [ldK(t)[0]]
        side[2][3] = [ldK(t)[1]]
        side[3][0] = ["s_waitcnt vmcnt(12)"]
        side[3][1] = list(adv)
        side[3][3] = [("V", (t + 1) % 4, 0)]
        if t == 0:
            side[1][0] = ["s_waitcnt vmcnt(15)"]
            side[2][0] = ["s_waitcnt vmcnt(14)"]
            side[1][3] = ["s_add_u32 s43, s43, 1"]
        if t == 2:
            side[2][1] = [f"buffer_load_dword v{PT+1}, v{PT}, s[12:15], 0 offen sc1"]
        if t == 3:
            def red(q, chk):
                lab = f"A_nr{q}"
                x = ["s_cbranch_scc1 " + lab]
                if chk: x += [("Y",)]
                return x + [f"ds_write_b128 v{T+q}, {vr(O+16*q+4*i,4)} offset:{4096*q+1024*i}" for i in range(4)] + [lab + ":"]
            side[1][0] = ["s_cmp_lt_u32 s43, 4"]
            side[1][3] = red(0, True)
            side[2][1] = ["s_cmp_lt_u32 s43, 4"]
            side[2][3] = side[2][3] + red(1, False)
            side[3][2] = wrap[:2]
            side[3][3] = wrap[2:] + side[3][3] + ["s_cmp_lt_u32 s43, 4"]
        for q in range(4):
            Sc, Sn = S[q % 2], S[(q + 1) % 2]
            kb = t if q < 3 else (t + 1) % 4
            for g in range(4):
                a(f"v_exp_f32 v{Sc+4*g}, v{Sc+4*g}\nv_exp_f32 v{Sc+4*g+1}, v{Sc+4*g+1}")
                if g == 0: pv(a, (q + 3) % 4, 1)
                elif g == 3: pv(a, q, 0)
                else: qk(a, Sn, kb, (q + 1) % 4, g - 1)
                for s in side[q][g]:
                    if s == ("Y",): spin_lds(a, "A_y4", Z, MISC + 4, 4, T + 3)
                    elif isinstance(s, tuple): rdV(a, s[1], s[2])
                    else: a(s)
                a(f"v_exp_f32 v{Sc+4*g+2}, v{Sc+4*g+2}\nv_exp_f32 v{Sc+4*g+3}, v{Sc+4*g+3}")
                a(f"v_cvt_pk_bf16_f32 v{P+2*g}, v{Sc+4*g}, v{Sc+4*g+1}\nv_cvt_pk_bf16_f32 v{P+2*g+1}, v{Sc+4*g+2}, v{Sc+4*g+3}")
    a("s_cbranch_scc1 A_loop\n;STAMP 5\ns_mul_i32 s41, s3, 12288")
    pv(a, 3, 1)
    for i in range(4):
        a(f"ds_write_b128 v{T+2}, {vr(O+32+4*i,4)} offset:{8192+1024*i}")
    a(f"""
v_add_u32 v{T}, s41, v1
s_waitcnt lgkmcnt(0)
s_barrier
;STAMP 6
""")
    for i in range(12):
        a(f"ds_read_b128 {vr(O+4*i,4)}, v{T} offset:{1024*i}")
    for q in range(3):
        a(f"s_waitcnt lgkmcnt({8-4*q})")
        for i in range(8):
            a(f"v_pk_add_f32 {vr(OK_+2*i,2)}, {vr(OK_+2*i,2)}, {vr(O+16*q+2*i,2)}")
    a(f"""
s_mov_b32 s44, 0
A_norm:
s_cmp_eq_u32 s39, 0
s_cbranch_scc0 A_nodd
v_mov_b32 v{T+2}, v{OK_+12}
v_mov_b32 v{T+3}, v{OK_+12}
s_mov_b32 exec_lo, 0
v_mov_b32 v{OK_+12}, 0
s_mov_b32 exec_lo, -1
v_permlane32_swap_b32 v{T+2}, v{T+3}
s_branch A_nj
A_nodd:
v_mov_b32 v{T+2}, v{OK_}
v_mov_b32 v{T+3}, v{OK_}
s_mov_b32 exec_hi, 0
v_mov_b32 v{OK_}, 0
s_mov_b32 exec_hi, -1
v_permlane32_swap_b32 v{T+3}, v{T+2}
A_nj:
s_mov_b32 s46, 0x30800000
s_mov_b32 s47, 0x4e800000
v_rcp_f32 v{T+2}, v{T+3}
v_cmp_nge_f32 vcc, v{T+3}, s46
v_cmp_nle_f32 s[66:67], v{T+3}, s47
s_or_b64 vcc, vcc, s[66:67]
s_cmp_lg_u32 s44, 0
s_cbranch_scc1 A_store
s_cbranch_vccnz L_slow
A_store:
""")
    for i in range(8):
        a(f"v_pk_mul_f32 {vr(OK_+2*i,2)}, {vr(OK_+2*i,2)}, {vr(T+2,2)} op_sel_hi:[1,0]")
    for i in range(8):
        a(f"v_cvt_pk_bf16_f32 v{OK_+i}, v{OK_+2*i}, v{OK_+2*i+1}")
    a("s_nop 0")
    for p in range(2):
        a(f"v_permlane32_swap_b32 v{OK_+4*p}, v{OK_+4*p+2}\nv_permlane32_swap_b32 v{OK_+4*p+1}, v{OK_+4*p+3}")
    for p in range(2):
        a(f"buffer_store_dwordx4 {vr(OK_+4*p,4)}, v1, s[12:15], s42 offen offset:{1024*p}")

def slow(a):
    T = TT
    a(f"""
L_slow:
s_waitcnt vmcnt(0)
s_add_u32 s45, s38, 56
s_lshl_b32 s45, s45, 9
s_mov_b32 m0, s40
""")
    for i in range(16):
        a(f"v_mov_b32 v{OK_+i}, 0\nv_mov_b32 v{NM+i}, 0")
    a(f"""
v_mov_b32 v{T+2}, 0xff800000
S_pass:
s_mov_b32 s43, 0
s_mov_b32 s16, s45
S_loop:
buffer_load_dwordx4 {vr(KF,4)}, v{KA}, s[12:15], s16 offen sc1
buffer_load_dwordx4 {vr(KF+4,4)}, v{KA+1}, s[12:15], s16 offen offset:1024 sc1
buffer_load_dwordx4 v{VS}, s[12:15], s16 offen sc1 lds
buffer_load_dwordx4 v{VS}, s[12:15], s16 offen offset:1024 sc1 lds
s_add_u32 s16, s16, {QKV_T}
s_waitcnt vmcnt(0)
""")
    rdV(a, 0, 0); rdV(a, 0, 1)
    qk(a, S[0], 0, 3, 0, vr(NM, 16)); qk(a, S[0], 0, 3, 1)
    a("s_nop 11\ns_waitcnt lgkmcnt(0)\ns_cmp_eq_u32 s44, 0\ns_cbranch_scc0 S_exp")
    for i in range(8):
        a(f"v_max3_f32 v{T+2}, v{T+2}, v{S[0]+2*i}, v{S[0]+2*i+1}")
    a("s_branch S_next\nS_exp:")
    for i in range(16):
        a(f"v_exp_f32 v{S[0]+i}, v{S[0]+i}")
    for i in range(8):
        a(f"v_cvt_pk_bf16_f32 v{P+i}, v{S[0]+2*i}, v{S[0]+2*i+1}")
    a("s_nop 1")
    pv(a, 3, 0); pv(a, 3, 1)
    a(f"""
S_next:
s_add_u32 s43, s43, 1
s_cmp_lt_u32 s43, 64
s_cbranch_scc1 S_loop
s_nop 12
s_cmp_eq_u32 s44, 1
s_cbranch_scc1 A_norm
s_mov_b32 s44, 1
v_mov_b32 v{T+3}, v{T+2}
s_nop 1
v_permlane32_swap_b32 v{T+2}, v{T+3}
s_nop 1
v_max_f32 v{T+2}, v{T+2}, v{T+3}
""")
    for i in range(16):
        a(f"v_sub_f32 v{NM+i}, 0, v{T+2}")
    a("s_branch S_pass")

def outproj(a):
    T = TT
    OF = 104
    WF = 24
    AC = [72, 88]
    WR, YR, G = 4, 5, 6
    a(f"""
s_and_b32 s44, s3, 1
s_lshr_b32 s45, s3, 1
s_bfe_u32 s34, s69, 0x30002
s_and_b32 s46, s69, 3
s_lshl2_add_u32 s46, s68, s46
s_lshl1_add_u32 s46, s46, s44
s_lshl1_add_u32 s47, s34, s45
; W tr base (8hf + i/4)*64 + ((l>>4)&1)*32 + (i%4)*8 + kh*224 rows ; y tr base
v_bfe_u32 v{T}, v0, 2, 2
v_lshl_add_u32 v{T}, v3, 2, v{T}
v_lshlrev_b32 v{T}, 6, v{T}
v_and_b32 v{T+1}, 16, v0
v_lshl_add_u32 v{T}, v{T+1}, 1, v{T}
v_and_b32 v{T+1}, 3, v0
v_lshl_add_u32 v{T}, v{T+1}, 3, v{T}
s_mul_i32 s41, s3, {YG_SLOT}
s_add_u32 s41, s41, {YG}
v_add_u32 v{YR}, s41, v{T}
s_lshl_b32 s43, s44, 7
s_add_u32 s41, s41, s43
v_lshl_add_u32 v{G}, v2, 2, s41
v_lshl_add_u32 v{T}, v3, 8, v{T}
s_mul_i32 s41, s45, {224*64 + 28672}
s_add_u32 s41, s41, {WO_B}
v_add_u32 v{WR+3}, s41, v{T}
s_mul_i32 s41, s45, {224*64 - 28672}
s_add_u32 s41, s41, {WO_B + 28672}
v_add_u32 v{WR}, s41, v{T}
v_lshlrev_b32 v{T}, 9, v0
s_lshr_b32 s41, s46, 2
s_lshl1_add_u32 s41, s41, s45
s_lshl_b32 s41, s41, 5
s_and_b32 s43, s46, 3
s_add_u32 s41, s41, s43
s_lshl_b32 s41, s41, 7
s_add_u32 s41, s41, {FO_OFF}
s_lshl1_add_u32 s42, s46, s45
s_lshl_b32 s42, s42, 14
s_add_u32 s42, s42, {O_OFF}
ds_read_b32 v{G}, v{G} offset:2048
""")
    YP, YV = 40, 48
    for q in range(4):
        a(f"ds_read_b64_tr_b16 {vr(YP+2*q,2)}, v{YR} offset:{512*q}")
    def rw(k):
        row = 56 * (k // 4) + (0, 16, 24, 40)[k % 4]
        F = WF + 8 * (k % 2)
        for c in range(2):
            for t in range(2):
                a(f"ds_read_b64_tr_b16 {vr(F+4*c+2*t,2)}, v{WR+3*c} offset:{row*64+t*256}")
    rw(0); rw(1)
    a(f"""
s_waitcnt vmcnt(0)
;STAMP 7
s_mov_b64 exec, 1
buffer_store_dwordx2 {vr(TK,2)}, v{Z}, s[12:15], s21 offen
s_mov_b64 exec, -1
s_cmp_eq_u32 s34, 7
s_cbranch_scc1 L_end
s_waitcnt lgkmcnt(8)
v_sub_f32 v{G+5}, 1.0, v{G}
""")
    for i in range(8):
        a(f"v_lshlrev_b32 v{YV+2*i}, 16, v{YP+i}\nv_and_b32 v{YV+1+2*i}, 0xffff0000, v{YP+i}")
    for i in range(16):
        a(f"v_mul_f32 v{YV+i}, v{YV+i}, v{G+5}")
    spin_global(a, "O_spo", T + 2, T, "s41", 0xff)
    a(";STAMP 8")
    for k in range(16):
        a(f"buffer_load_dwordx4 {vr(OF+4*k,4)}, v1, s[12:15], s42 offen offset:{1024*(k%4)} sc1")
        if k % 4 == 3 and k < 15: a("s_add_u32 s42, s42, 4096")
    a(f"""
v_add_u32 v{T}, s40, v1
s_xor_b32 s41, s3, 2
s_mul_i32 s41, s41, {VWAVE}
s_add_u32 s41, s41, {VR}
v_add_u32 v{T+1}, s41, v1
v_mul_u32_u24 v{T+2}, 896, v2
v_lshl_add_u32 v{T+2}, v3, 4, v{T+2}
s_mul_i32 s41, s46, {32*896}
s_lshl_b32 s42, s47, 6
s_add_u32 s41, s41, s42
""")
    for k in range(16):
        F = WF + 8 * (k % 2)
        a(f"s_waitcnt vmcnt({15-k}) lgkmcnt({4 if k < 15 else 0})")
        for c in range(2):
            cc = "0" if k == 0 else vr(AC[c], 16)
            a(f"v_mfma_f32_32x32x16_bf16 {vr(AC[c],16)}, {vr(F+4*c,4)}, {vr(OF+4*k,4)}, {cc}")
        if k + 2 < 16: rw(k + 2)
    a(";STAMP 9\ns_nop 10")
    for i in range(4):
        a(f"ds_write_b128 v{T}, {vr(AC[0]+4*i,4)} offset:{1024*i}")
    for i in range(16):
        a(f"v_fmac_f32 v{YV+i}, v{AC[1]+i}, v{G}")
    a("s_waitcnt lgkmcnt(0)\ns_barrier")
    for i in range(4):
        a(f"ds_read_b128 {vr(AC[0]+4*i,4)}, v{T+1} offset:{1024*i}")
    for p in range(2):
        a(f"s_waitcnt lgkmcnt({2-2*p})")
        for i in range(8*p, 8*p + 8):
            a(f"v_fmac_f32 v{YV+i}, v{AC[0]+i}, v{G}")
        for i in range(4*p, 4*p + 4):
            a(f"v_cvt_pk_bf16_f32 v{YP+i}, v{YV+2*i}, v{YV+1+2*i}")
        a("s_nop 1")
        a(f"v_permlane32_swap_b32 v{YP+4*p}, v{YP+4*p+2}\nv_permlane32_swap_b32 v{YP+4*p+1}, v{YP+4*p+3}")
        a(f"buffer_store_dwordx4 {vr(YP+4*p,4)}, v{T+2}, s[56:59], s41 offen offset:{32*p}")
    a("s_endpgm")

from fused_aux import aux, gate
```

```python
from asmlib import *
from layout import *
import fused as F
import os
DUMPK = os.environ.get("DUMPK")
VAR = os.environ.get("VAR", "")

def _rho():
    r = [[(j >> 1) + 8 * (j & 1) for j in range(16)]]
    partner = [13, 12, 15, 14, 9, 8, 11, 10]
    for e in range(3):
        n = [None] * 16
        for j in range(8):
            n[j] = r[e][2*j]; n[partner[j]] = n[j] ^ 8
        assert sorted(n) == list(range(16))
        r.append(n)
    return r
RHO = _rho()

def ticket(a):
    a(f"""
s_lshl_b32 s41, s68, 4
s_add_u32 s41, s41, 128
s_mov_b32 s33, 1
s_atomic_add s33, s[48:49], s41 glc
""")

def put_role(a, tmp, z):
    a(f"""
s_and_b32 s41, s33, 31
s_lshl_b32 s69, s68, 5
s_add_u32 s41, s41, s69
s_add_u32 s41, s41, 1
v_mov_b32 v{tmp}, s41
ds_write_b32 v{z}, v{tmp} offset:{F.MISC+8}
""")

def aux(a):
    SL = F.SL
    TK, Z = 8, 10
    RAW = 12
    DT = 16
    AA = 20
    RL = 24
    XF = 19
    MA = 25
    T = 26
    GA = list(range(239, 256))
    W = 34
    S0 = 38
    H = [42, 44]
    R = [46, 62]
    ACC = 78
    lo_r = lambda ps, i: (144 + i) if ps == 1 else (144 + i if i < 16 else 94 + i - 16)
    hi_r = lambda ps, i: (184 + i) if ps == 1 else (160 + i if i < 16 else 118 + i - 16)
    FAs = [46, 94]; FBs = [62, 118]; FE = 176
    FA, GAa, FA2 = 6, 7, 20
    NG = 17
    a(f"""
L_aux:
s_sub_u32 s3, s3, 4
s_lshr_b32 s36, s3, 1
s_and_b32 s37, s3, 1
s_lshr_b32 s39, s61, 5
s_lshr_b32 s38, s61, 6
s_add_u32 s38, s38, s36
s_lshl_b32 s40, s38, 9
s_lshl_b32 s41, s37, 8
s_add_u32 s40, s40, s41
v_lshl_add_u32 v{T}, v0, 2, s40
s_getpc_b64 s[66:67]
A_pc:
s_sub_u32 s66, s66, A_pc-{F.NAME}
s_subb_u32 s67, s67, 0
v_lshlrev_b32 v{T+1}, 7, v0
s_lshl_b32 s41, s3, 13
v_add_u32 v{T+1}, s41, v{T+1}
v_min_u32 v{T+1}, L_code_end-{F.NAME}-4, v{T+1}
global_load_dword v5, v{T+1}, s[66:67]
v_mov_b32 v{Z}, 0
v_mov_b32 v{MA}, {F.MISC}
v_lshl_add_u32 v{T+3}, v0, 2, v{MA}
ds_write_b32 v{T+3}, v{Z}
s_waitcnt lgkmcnt(0)
global_load_dword v{RAW}, v{T}, s[16:17]
global_load_dword v{RAW+1}, v{T}, s[18:19]
global_load_dword v{RAW+2}, v{T}, s[20:21]
global_load_dword v{RAW+3}, v{T}, s[22:23]
s_load_dword s44, s[24:25], s39
s_load_dword s45, s[26:27], s39
s_mov_b32 s47, 0
s_or_b32 s41, s2, s3
s_cmp_lg_u32 s41, 0
s_cbranch_scc1 X_notok
s_or_b32 s64, s64, 1
v_mov_b32 v{TK}, s64
v_mov_b32 v{TK+1}, s65
v_mov_b32 v{TK+3}, 0
s_mov_b64 exec, 1
global_atomic_cmpswap_x2 v{Z}, {vr(TK,4)}, s[48:49] sc1
s_mov_b64 exec, -1
s_mov_b32 s47, 1
X_notok:
""")
    a(f"""
s_barrier
s_mul_i32 s42, s36, {F.CH_AREA}
s_mul_i32 s43, s37, {F.KG_AREA}
s_add_u32 s43, s43, s42
s_add_u32 s43, s43, {F.CPY}
s_add_u32 s46, s42, {F.TAB}
s_lshl_b32 s41, s3, 2
v_add_u32 v{MA}, s41, v{MA}
""")
    for i in range(16):
        a(f"v_mov_b32 v{ACC+i}, 0")
    a(f"""
v_add_u32 v{T}, s42, v1
s_mov_b64 exec, 0x3fffffff
ds_write_b128 v{T}, {vr(ACC,4)} offset:{F.XP}
s_mul_i32 s50, s37, {F.TABK*256}
s_add_u32 s50, s50, s42
s_mov_b64 exec, -1
v_and_b32 v{T}, 15, v0
v_lshlrev_b32 v{T}, 2, v{T}
v_lshrrev_b32 v{T+3}, 4, v0
v_and_b32 v{T+1}, 16, v0
v_lshl_add_u32 v{T+1}, v{T+1}, 3, s43
v_lshl_add_u32 v{T+1}, v3, 6, v{T+1}
s_movk_i32 s41, {SL}
""")
    for e in range(4):
        c = sum(RHO[e][j] << (4*j) for j in range(16))
        a(f"""
s_mov_b32 s66, {hex(c & 0xffffffff)}
s_mov_b32 s67, {hex(c >> 32)}
v_lshrrev_b64 {vr(T+4,2)}, v{T}, s[66:67]
v_and_b32 v{T+4}, 15, v{T+4}
v_mad_u32_u24 v{AA+e}, v{T+4}, s41, v{T+1}
""")
    a(f"""
s_lshl_b32 s41, s37, 10
s_sub_u32 s41, 2047, s41
v_sub_u32 v{T}, s41, v1
v_cvt_f32_i32 v{T+1}, v{T}
""")
    def magic():
        a(f"""
v_ffbh_u32 v{T+4}, v{T}
v_sub_u32 v{T+4}, 24, v{T+4}
v_med3_i32 v{T+4}, v{T+4}, 0, 3
v_lshlrev_b32 v{T+5}, 23, v{T+4}
v_add_u32 v{T+5}, 0x4b400000, v{T+5}
v_lshlrev_b32 v{T+6}, 2, v{T+5}
v_lshlrev_b32 v{T+4}, 9, v{T+4}
v_sub_u32 v{T+4}, v{T+4}, v{T+6}
""")
    magic()
    for k in range(17):
        if k == 16:
            a(f"v_subrev_u32 v{T}, 16, v{T}\nv_max_i32 v{T}, 1, v{T}")
            magic()
        a(f"v_add_f32 v{GA[k]}, v{T+1}, v{T+5}")
        if k < 16: a(f"v_add_f32 v{T+1}, -1.0, v{T+1}")
        a(f"""
v_lshl_add_u32 v{GA[k]}, v{GA[k]}, 2, v{T+4}
v_ashrrev_i32 v{T+2}, 6, v{GA[k]}
v_lshl_add_u32 v{T+2}, v{T+2}, 4, s50
v_add_u32 v{GA[k]}, v{GA[k]}, v{T+2}
""")
    a(f"""
v_and_b32 v{T+4}, 15, v0
v_sub_u32 v{T}, 15, v{T+4}
v_and_b32 v{T+2}, 1, v{T}
v_mul_u32_u24 v{T+2}, 4158, v{T+2}
v_lshl_add_u32 v{T}, v{T}, 1, v{T+2}
s_lshl_b32 s41, s37, 8
s_add_u32 s41, s41, s42
v_lshl_add_u32 v{T+2}, v{T+3}, 4, s41
v_add_u32 v{FA}, v{T}, v{T+2}
v_lshl_add_u32 v{GAa}, v{T+4}, 5, v{T+2}
""")
    a(f"""
s_mov_b32 m0, s43
s_waitcnt lgkmcnt(0)
s_lshl_b32 s41, s36, 4
s_lshr_b32 s44, s44, s41
s_lshl_b32 s44, s44, 16
s_lshr_b32 s45, s45, s41
s_lshl_b32 s45, s45, 16
v_mov_b32 v{DT+2}, {hex(f2u(LOG2E))}
v_mul_f32 v{DT}, s44, v{DT+2}
v_exp_f32 v{DT}, v{DT}
s_mov_b64 exec, 1
v_mul_f32 v{ACC}, s45, 0.5
s_mov_b64 exec, -1
v_cvt_pk_bf16_f32 v{DT}, v{DT}, v{DT}
v_lshlrev_b32 v{DT}, 16, v{DT}
v_add_f32 v{DT+1}, v{DT}, v{DT}
v_lshlrev_b32 v{XF}, 7, v2
s_lshl_b32 s51, s68, 15
s_add_u32 s51, s51, {FQ_OFF + 224*128}
s_waitcnt vmcnt(1)
s_cmp_lg_u32 s47, 0
s_cbranch_scc1 X_go
s_waitcnt vmcnt(0)
X_go:
;STAMP 0
""")
    def cmul(d, x, w):
        return [f"v_mul_f32 v{d}, v{x}, v{w}", f"v_mul_f32 v{d+1}, v{x+1}, v{w}",
                f"v_fmac_f32 v{d}, v{x+1}, v{w+2}", f"v_fmac_f32 v{d+1}, v{x}, v{w+1}"]
    def csq(d, x, t):
        return [f"v_mul_f32 v{t}, v{x+1}, v{x+1}", f"v_mul_f32_e64 v{d+1}, v{x}, v{x+1} mul:2", f"v_fma_f32 v{d}, v{x}, v{x}, -v{t}"]
    def merge(x, y):
        out = []; i = j = 0
        while i < len(x) or j < len(y):
            if j >= len(y) or (i < len(x) and i * len(y) <= j * len(x)): out.append(x[i]); i += 1
            else: out.append(y[j]); j += 1
        return out
    R0, R1 = R
    L = lambda k: R0 + 2*k
    U = lambda k: R1 + 2*k
    rdA = lambda e, fa: [f"ds_read_b128 {vr(fa+4*q,4)}, v{AA+e} offset:{16*q}" for q in range(4)]
    rdB = lambda fb: [f"ds_read_b128 {vr(fb+4*q,4)}, v{AA} offset:{16*SL+16*q}" for q in range(4)]
    mfmas = lambda e, fa, fb: [f"v_mfma_f32_16x16x32_bf16 {vr(ACC+4*e,4)}, {vr(fa+4*q,4)}, {vr(fb+4*q,4)}, {vr(ACC+4*e,4)}" for q in range(4)]
    wlo = lambda ps, b, k0=0: [f"ds_write_addtid_b32 v{lo_r(ps,8*b+k)} offset:{RHO[max(b-1,0)][(8 if b else 0)+k]*SL}" for k in range(k0, 8)]
    whi = lambda ps, b, n=8: [f"ds_write_addtid_b32 v{hi_r(ps,8*b+k)} offset:{(16+RHO[0][8*(b%2)+k])*SL}" for k in range(n)]
    def spread(body, ms, at):
        out = list(body)
        for i, m in reversed(list(enumerate(ms))): out.insert(at + 4*i, m)
        out.insert(at, "s_waitcnt lgkmcnt(0)")
        return out
    stream = []
    for ps in range(2):
        ex = (lambda d, r: f"v_lshlrev_b32 v{d}, 16, v{r}") if ps == 0 else (lambda d, r: f"v_and_b32 v{d}, 0xffff0000, v{r}")
        stream += f"""
{ex(T, RAW)}
{ex(T+1, RAW+1)}
v_mul_f32 v{T}, v{T}, v{DT+2}
v_exp_f32 v{T}, v{T}
v_mul_f32 v{T+1}, v{T+1}, v{DT}
v_mul_f32 v{T+1}, 0.15915494, v{T+1}
v_cvt_pk_bf16_f32 v{T}, v{T}, v{T}
v_rndne_f32 v{T+2}, v{T+1}
v_lshlrev_b32 v{T}, 16, v{T}
v_sub_f32 v{T+1}, v{T+1}, v{T+2}
v_mul_f32 v{T}, v{T}, v{DT}
v_mul_f32 v{T}, v{T}, -v{DT+2}
v_cos_f32 v{W}, v{T+1}
v_sin_f32 v{W+1}, v{T+1}
v_exp_f32 v{T+2}, v{T}
v_mul_f32 v{T+1}, 0x41800000, v{T+1}
v_mul_f32 v{T}, 0x41800000, v{T}
v_mul_f32 v{W}, v{W}, v{T+2}
v_mul_f32 v{W+1}, v{W+1}, v{T+2}
v_cos_f32 v{S0}, v{T+1}
v_sin_f32 v{S0+2}, v{T+1}
v_exp_f32 v{T+2}, v{T}
v_sub_f32 v{W+2}, 0, v{W+1}
{ex(H[0], RAW+2)}
{ex(H[0]+1, RAW+3)}
v_mul_f32 v{S0}, v{S0}, v{T+2}
v_mul_f32 v{S0+2}, v{S0+2}, v{T+2}
v_mul_f32 v{H[0]}, v{H[0]}, v{DT+1}
v_mul_f32 v{H[0]+1}, v{H[0]+1}, -v{DT+1}
v_sub_f32 v{S0+1}, 0, v{S0+2}
""".strip().split("\n")
        lo_init = csq(L(2), W, T) + cmul(L(3), L(2), W) + csq(L(4), L(2), T) + cmul(L(5), L(4), W) + csq(L(6), L(3), T) + cmul(L(7), L(6), W)
        lo_b1 = []
        for k in range(4): lo_b1 += csq(U(2*k), L(4+k), T) + cmul(U(2*k+1), U(2*k), W)
        lo_sq = []
        for k in range(8): lo_sq += csq(U(k), U(k), T + (k % 2))
        hs = 0
        for b in range(5):
            if b >= 2: stream += csq(S0, S0, T + 2) + [f"v_sub_f32 v{S0+2}, 0, v{S0+1}"]
            if b == 0:
                cv = ([f"v_mov_b32 v{lo_r(0,0)}, 0x3f80"] if ps == 0 else []) + [f"v_cvt_pk_bf16_f32 v{lo_r(ps,1)}, v{W}, v{W+1}"] + [f"v_cvt_pk_bf16_f32 v{lo_r(ps,k)}, v{L(k)}, v{L(k)+1}" for k in range(2, 8)]
            else:
                cv = [f"v_cvt_pk_bf16_f32 v{lo_r(ps,8*b+k)}, v{U(k)}, v{U(k)+1}" for k in range(8)]
            hi = []
            for k in range(9 if b == 4 else 8):
                hi.append(f"v_cvt_pk_bf16_f32 v{hi_r(ps,8*b+k)}, v{H[hs]}, v{H[hs]+1}")
                if k < 8:
                    hi += cmul(H[1-hs], H[hs], S0); hs ^= 1
            blk_ = merge((lo_init, lo_b1, lo_sq, lo_sq, lo_sq)[b] + cv, hi)
            if ps == 0:
                if b == 2:
                    blk_ = spread(blk_, mfmas(0, FE, FE + 16), 50)
                    first_bar = len(stream) + len(blk_)
                if b < 2: blk_ += wlo(0, b) + whi(0, b)
                if b == 1: blk_ += rdA(0, FE) + rdB(FE + 16)
            stream += blk_
    B0 = first_bar + int(os.environ.get("B0", "110")); BD = int(os.environ.get("BD", "70"))
    bars = [min(B0 + BD*i, len(stream)) for i in range(7)]
    nb = 0
    for i in range(len(stream) + 1):
        for _ in range(bars.count(i)):
            a("s_barrier")
            if nb == 0:
                a(";STAMP 9\ns_cmp_lg_u32 s3, 1\ns_cbranch_scc1 X_notick")
                ticket(a)
                a("X_notick:")
            if nb == 3: a(f"global_load_dwordx2 {vr(TK,2)}, v{Z}, s[48:49] sc1")
            nb += 1
        if i < len(stream): a(stream[i])
    a(";STAMP 6\ns_setprio 1\ns_waitcnt vmcnt(0) lgkmcnt(0)\ns_cmp_lg_u32 s3, 1\ns_cbranch_scc1 X_norole")
    put_role(a, RL, Z)
    a("X_norole:")
    F.token_finish(a, "X_tok", TK, Z)
    def xp_dma():
        a("s_cmp_lg_u32 s3, 0\ns_cbranch_scc1 X_noxp")
        a("s_waitcnt vmcnt(0)\nv_cmp_ne_u64 vcc, v[4:5], s[62:63]\ns_cmp_eq_u32 vcc_lo, 0\ns_cbranch_scc1 X_xok")
        F.spin_global(a, "X_spx", 4, XF, "s51", 0xffffffff)
        a(f"""
X_xok:
s_lshl_b32 s44, s38, 12
s_mov_b32 m0, {F.XP + 480}
s_add_u32 s44, s44, {XT_OFF}
""")
        for c in range(2):
            for i in range(4):
                a(f"buffer_load_dwordx4 v1, s[12:15], s44 offen offset:{1024*i} sc1 lds")
            if c == 0: a(f"s_mov_b32 m0, {F.CH_AREA + F.XP + 480}\ns_add_u32 s44, s44, 4096")
        a("s_mov_b32 m0, s43\nX_noxp:\ns_lshl_b32 s45, s37, 11\ns_add_u32 s45, s45, s42")
    a(f"""
{"" if "nob8" in VAR else "s_barrier"}
s_cmp_lg_u32 s3, 0
s_cbranch_scc1 X_nop
s_mov_b32 exec_hi, 0
buffer_load_dwordx2 v[4:5], v{XF}, s[12:15], s51 offen sc1
s_mov_b32 exec_hi, -1
X_nop:
""")
    a(";STAMP 7")
    W15 = ["s_waitcnt lgkmcnt(15)"]
    A0_, A1_, B0_, B1_ = FAs[0], FAs[1], FBs[0], FBs[1]
    for x in (wlo(0, 2) + whi(0, 2) + whi(0, 3) + rdA(1, A0_) + rdB(B0_) + wlo(0, 3) + rdA(2, A1_) + wlo(0, 4) + W15 + mfmas(1, A0_, B0_) +
              whi(0, 4, 9) + W15 + mfmas(2, A1_, B0_) + rdA(3, A0_) + rdB(B1_) + wlo(1, 0, 1) + wlo(1, 1) + W15 + mfmas(3, A0_, B1_) +
              whi(1, 0) + whi(1, 1) + rdA(0, A1_) + rdB(B0_)): a(x)
    xp_dma()
    for x in (wlo(1, 2) + whi(1, 2) + whi(1, 3) + W15 + mfmas(0, A1_, B0_) + rdA(1, A0_) + rdB(B1_) + wlo(1, 3) + rdA(2, A1_) + wlo(1, 4) + W15 +
              mfmas(1, A0_, B1_) + whi(1, 4, 9) + W15 + mfmas(2, A1_, B1_) + rdA(3, A0_) + rdB(B0_) + ["s_waitcnt lgkmcnt(0)"] + mfmas(3, A0_, B0_)): a(x)
    a(";STAMP 1")
    a(f"""
v_and_b32 v{T}, 15, v0
v_mul_u32_u24 v{T}, 80, v{T}
v_lshl_add_u32 v{T}, v{T+3}, 4, v{T}
v_add_u32 v{T}, s50, v{T}
s_mov_b32 exec_lo, 0xff00ff00
s_mov_b32 exec_hi, 0xff00ff00
v_mov_b32 v{ACC+4}, v{ACC+8}
v_mov_b32 v{ACC+5}, v{ACC+9}
v_mov_b32 v{ACC+6}, v{ACC+10}
v_mov_b32 v{ACC+7}, v{ACC+11}
s_mov_b64 exec, -1
v_mov_b32 v{T+1}, 1
ds_write_b128 v{T}, {vr(ACC,4)} offset:{F.TAB}
ds_write_b128 v{T}, {vr(ACC+4,4)} offset:{F.TAB+1280}
s_mov_b32 exec_lo, 0x01ff01ff
s_mov_b32 exec_hi, 0x01ff01ff
ds_write_b128 v{T}, {vr(ACC+12,4)} offset:{F.TAB+2560}
s_mov_b64 exec, -1
ds_write_b32 v{MA}, v{T+1} offset:16
v_xor_b32 v{MA}, 4, v{MA}
s_mul_i32 s41, s37, {-2*F.TABK*256}
s_add_u32 s41, s41, {F.TABK*256}
v_add_u32 v{T+4}, s41, v{T}
""")
    F.spin_lds(a, "X_a1", MA, 16, 1, T + 2)
    a(";STAMP 2")
    V = 96
    CP = 136
    A0, A1 = 46, 62
    for i, o in enumerate((0, 1280, 2560)):
        a(f"ds_read_b128 {vr(V+4*i,4)}, v{T+4} offset:{F.TAB+o}")
    for i in range(4):
        a(f"v_mov_b32 v{A0+i}, 0")
    a(f"""
v_lshrrev_b32 v{T+2}, 2, v0
v_mul_u32_u24 v{T+2}, {4160-64}, v{T+2}
v_add3_u32 v{T+2}, v{T+2}, v1, s42
s_mov_b64 exec, 0xff
ds_write_b128 v{T+2}, {vr(A0,4)} offset:{F.CPY+4096}
s_mov_b64 exec, -1
s_waitcnt lgkmcnt(1)
""")
    for i, r in enumerate((ACC, ACC + 4, ACC + 12)):
        for k in range(4): a(f"v_add_f32 v{r+k}, v{r+k}, v{V+4*i+k}")
    a(f"""
ds_write_b128 v{T}, {vr(ACC,4)} offset:{F.SUM}
ds_write_b128 v{T}, {vr(ACC+4,4)} offset:{F.SUM+1280}
s_mov_b32 exec_lo, 0x01ff01ff
s_mov_b32 exec_hi, 0x01ff01ff
ds_write_b128 v{T}, {vr(ACC+12,4)} offset:{F.SUM+2560}
s_mov_b64 exec, 3
v_add_u32 v{T+2}, s50, v1
ds_write_b128 v{T+2}, {vr(A0,4)} offset:{F.SUM-32}
s_mov_b64 exec, -1
""")
    for k in range(NG):
        a(f"ds_read_b32 v{V+k}, v{GA[k]} offset:{F.SUM}")
    a(f"""
v_lshl_add_u32 v{T}, v0, 5, s45
v_add_u32 v{FA2}, 1024, v{FA}
v_add_u32 v{FA2+1}, 2048, v{FA}
v_add_u32 v{FA2+2}, 3072, v{FA}
s_waitcnt lgkmcnt(0)
;STAMP 10
""")
    for q in range(2):
        for i in range(8):
            a(f"v_cvt_pk_bf16_f32 v{CP+8*q+i}, v{V+q+2*i}, v{V+q+2*i+1}")
        for i in range(2):
            a(f"ds_write_b128 v{T}, {vr(CP+8*q+4*i,4)} offset:{F.CPY+4160*q+16*i}")
    if DUMPK:
        a(f"""
v_lshlrev_b32 v{T+2}, 5, v0
s_lshl_b32 s44, s38, 12
s_lshl_b32 s45, s37, 11
s_add_u32 s44, s44, s45
s_add_u32 s44, s44, {KD_OFF}
s_cmp_ge_u32 s38, 256
s_cselect_b32 s44, 0x70000000, s44
buffer_store_dwordx4 {vr(CP,4)}, v{T+2}, s[12:15], s44 offen
buffer_store_dwordx4 {vr(CP+4,4)}, v{T+2}, s[12:15], s44 offen offset:16
""")
    a(f"""
v_xor_b32 v{T}, 4, v{MA}
s_waitcnt vmcnt(0) lgkmcnt(0)
;STAMP 11
ds_write_b32 v{T}, v{T+1} offset:32
""")
    F.spin_lds(a, "X_a2", MA, 32, 1, T + 2)
    F.spin_lds(a, "X_a20", Z, F.MISC + 32, 1, T + 2)
    a(";STAMP 3")
    CF = [96, 160]
    def crd(B, off):
        out = []
        for m in range(8):
            fr = ([FA] + [FA2 + i for i in range(3)])[(7 - m) // 2]
            o = (F.CPY + off + 512 * ((7 - m) % 2)) // 4
            out += [f"ds_read_b128 {vr(B+32+4*m,4)}, v{GAa} offset:{F.XP+off+512*m}",
                    f"ds_read2_b32 {vr(B+4*m,2)}, v{fr} offset0:{o} offset1:{o+1}",
                    f"ds_read2_b32 {vr(B+4*m+2,2)}, v{fr} offset0:{o+2} offset1:{o+3}"]
        return out
    first = crd(CF[0], 0)
    for x in first[:15]: a(x)
    pairs = sorted(((m, g) for m in range(8) for g in range(8) if m + g <= 7), key=lambda p: (max(p), p))
    for st in range(4):
        B = CF[st % 2]
        nxt = crd(CF[1 - st % 2], 64*(st+1)) if st < 3 else []
        if st == 0: nxt = first[15:] + nxt
        else: a("s_waitcnt lgkmcnt(0)")
        issued = 15; lvl = -1
        for n, (m, g) in enumerate(pairs):
            if st == 0 and max(m, g) > lvl:
                lvl = max(m, g)
                a(f"s_waitcnt lgkmcnt({min(15, issued - 3*(lvl+1))})")
            c = "0" if st == 0 and (m, g) == min((p for p in pairs if sum(p) == m + g), key=pairs.index) else vr(A0+4*(m+g), 4)
            a(f"v_mfma_f32_16x16x32_bf16 {vr(A0+4*(m+g),4)}, {vr(B+4*m,4)}, {vr(B+32+4*g,4)}, {c}")
            if n < len(nxt):
                a(nxt[n]); issued += 1
    a(f"""
;STAMP 4
s_setprio 0
s_barrier
s_add_u32 s42, s42, {F.TB0}
s_lshl_b32 s41, s37, 12
s_add_u32 s44, s41, s42
v_add_u32 v{T+4}, s44, v1
s_xor_b32 s41, s41, 4096
s_add_u32 s44, s41, s42
v_add_u32 v{T+3}, s44, v1
s_cmp_eq_u32 s37, 0
s_cbranch_scc1 X_noswap
""")
    for i in range(16):
        a(f"v_swap_b32 v{A0+i}, v{A1+i}")
    a("X_noswap:")
    for i in range(4):
        a(f"ds_write_b128 v{T+4}, {vr(A1+4*i,4)} offset:{1024*i}")
    a(f"ds_write_b32 v{T}, v{T+1} offset:64")
    F.spin_lds(a, "X_a4", MA, 64, 1, T + 2)
    for i in range(4):
        a(f"ds_read_b128 {vr(A1+4*i,4)}, v{T+3} offset:{1024*i}")
    a(f"""
v_and_b32 v{T}, 15, v0
v_lshl_add_u32 v{T}, v{T}, 5, s44
v_lshrrev_b32 v{T+4}, 4, v0
v_lshl_add_u32 v{T}, v{T+4}, 3, v{T}
s_lshl_b32 s41, s38, 12
s_lshl_b32 s44, s37, 11
s_add_u32 s41, s41, s44
s_add_u32 s41, s41, {YT_OFF}
s_waitcnt lgkmcnt(0)
""")
    for i in range(16):
        a(f"v_add_f32 v{A0+i}, v{A0+i}, v{A1+i}")
    for i in range(8):
        a(f"v_cvt_pk_bf16_f32 v{A0+i}, v{A0+2*i}, v{A0+2*i+1}")
    for p in range(4):
        a(f"ds_write_b64 v{T}, {vr(A0+2*p,2)} offset:{512*p}")
    for p in range(2):
        a(f"ds_read_b128 {vr(A1+4*p,4)}, v{T+3} offset:{1024*p}")
    a("s_waitcnt lgkmcnt(0)\n;STAMP 8")
    for p in range(2):
        a(f"buffer_store_dwordx4 {vr(A1+4*p,4)}, v1, s[12:15], s41 offen offset:{1024*p} sc1")
    a(f"""
s_waitcnt vmcnt(0)
;STAMP 5
s_mov_b64 exec, 1
ds_add_rtn_u32 v{T+1}, v{Z}, v{T+1} offset:{F.MISC+4}
s_mov_b64 exec, -1
s_add_u32 s41, s61, {FY_OFF}
s_waitcnt lgkmcnt(0)
v_readfirstlane_b32 s44, v{T+1}
s_cmp_lg_u32 s44, 3
s_cbranch_scc1 X_nopub
""")
    F.publish8(a, TK, T + 1, "s41")
    a("X_nopub:")
    F.spin_lds(a, "X_y4", Z, F.MISC + 4, 4, T + 2)
    a("X_tail_wo:")
    F.get_role(a, "X_role", Z, T + 2)
    a(f"""
s_bfe_u32 s39, s69, 0x30002
s_cmp_eq_u32 s39, 7
s_cbranch_scc1 L_end
v_lshrrev_b32 v{T+2}, 2, v0
v_and_b32 v{T+3}, 3, v0
v_mul_u32_u24 v{T+2}, 896, v{T+2}
v_lshl_add_u32 v{T+2}, v{T+3}, 4, v{T+2}
s_mul_i32 s41, s3, {112*896}
s_lshl_b32 s44, s39, 7
s_add_u32 s41, s41, s44
s_mul_i32 s44, s3, 7168
s_add_u32 s44, s44, {F.WO_B}
s_add_u32 s45, s44, 7168
X_wo:
s_mov_b32 m0, s44
s_nop 0
buffer_load_dwordx4 v{T+2}, s[52:55], s41 offen lds
s_add_u32 m0, s44, {28672-64}
s_add_u32 s44, s44, 1024
buffer_load_dwordx4 v{T+2}, s[52:55], s41 offen offset:64 lds
s_add_u32 s41, s41, {16*896}
s_waitcnt vmcnt(4)
s_cmp_lt_u32 s44, s45
s_cbranch_scc1 X_wo
""")
    a(f"""
s_lshr_b32 s36, s3, 1
s_lshl1_add_u32 s36, s39, s36
s_and_b32 s44, s69, 3
s_lshl2_add_u32 s44, s68, s44
s_lshl_b32 s41, s36, 11
v_lshl_add_u32 v{T}, v0, 7, s41
s_lshl_b32 s41, s44, 7
s_add_u32 s41, s41, {224*128}
s_mov_b64 exec, 0x10000
v_mov_b32 v{T}, s41
s_lshl_b32 s41, s68, 15
s_add_u32 s41, s41, {FY_OFF}
""")
    F.spin_global(a, "X_spy", T + 2, T, "s41", 0x1ffff)
    a(f"""
v_lshrrev_b32 v{T}, 2, v0
v_and_b32 v{T+1}, 3, v0
v_lshlrev_b32 v{T+1}, 4, v{T+1}
v_lshl_add_u32 v{T}, v{T}, 12, v{T+1}
s_and_b32 s45, s3, 1
s_lshl1_add_u32 s45, s44, s45
s_lshl_b32 s45, s45, 6
s_lshl_b32 s41, s36, 17
s_add_u32 s41, s41, s45
s_add_u32 s41, s41, {YT_OFF}
s_mul_i32 s45, s3, {F.YG_SLOT}
s_add_u32 m0, s45, {F.YG}
s_add_u32 s45, s41, {65536-1024}
buffer_load_dwordx4 v{T}, s[12:15], s41 offen sc1 lds
buffer_load_dwordx4 v{T}, s[12:15], s45 offen offset:1024 sc1 lds
v_lshlrev_b32 v{T}, 2, v0
s_lshl_b32 s41, s44, 8
s_add_u32 s41, s41, {G_OFF-2048}
buffer_load_dword v{T}, s[12:15], s41 offen offset:2048 sc1 lds
s_waitcnt vmcnt(0)
s_endpgm
""")

def gate(a):
    TK, Z = 8, 10
    T = 12
    X, W = 24, 52
    XT = 80
    RD = 16
    a(f"""
L_gate:
s_lshl_b32 s36, s35, 6
v_lshrrev_b32 v{T}, 3, v0
v_add_u32 v{T}, s36, v{T}
v_mul_u32_u24 v4, 896, v{T}
v_lshrrev_b32 v{T+1}, 4, v0
v_xor_b32 v{T+2}, v{T+1}, v0
v_and_b32 v{T+2}, 7, v{T+2}
v_lshl_add_u32 v5, v{T+2}, 4, v4
v_xor_b32 v{T+2}, 4, v{T+2}
v_lshl_add_u32 v6, v{T+2}, 4, v4
v_add_u32 v6, {8*896-1024}, v6
s_lshl_b32 s37, s3, 14
s_mov_b32 m0, s37
s_lshl_b32 s38, s3, 7
v_mov_b32 v{Z+1}, {F.MISC}
v_mov_b32 v{Z}, 0
v_mov_b32 v{Z-1}, 4
ds_write2_b32 v{Z+1}, v{Z-1}, v{Z} offset0:1 offset1:2
s_waitcnt lgkmcnt(0)
s_cmp_eq_u32 s3, 7
s_cbranch_scc1 T_w7
""")
    for i in range(4):
        a(f"""
buffer_load_dwordx4 v5, s[4:7], s38 offen lds
buffer_load_dwordx4 v6, s[4:7], s38 offen offset:1024 lds
""")
        if i < 3: a(f"s_add_u32 m0, m0, 2048\ns_add_u32 s38, s38, {16*896}")
    a(f"""
v_bfe_u32 v{T+2}, v0, 2, 2
v_lshl_add_u32 v{T+2}, v{T+1}, 4, v{T+2}
v_lshl_add_u32 v{T+2}, v{T+2}, 7, s37
v_lshrrev_b32 v{T+3}, 2, v0
v_xor_b32 v{T+3}, v{T+3}, v0
v_and_b32 v{T+3}, 2, v{T+3}
v_lshl_add_u32 v{T+2}, v{T+3}, 3, v{T+2}
v_and_b32 v{T+3}, 1, v0
v_lshl_add_u32 v{RD}, v{T+3}, 3, v{T+2}
v_xor_b32 v{RD+1}, 32, v{RD}
v_xor_b32 v{RD+2}, 64, v{RD}
v_xor_b32 v{RD+3}, 96, v{RD}
v_and_b32 v{T+2}, 15, v0
v_mul_u32_u24 v{T+2}, 144, v{T+2}
v_lshl_add_u32 v{T+2}, v{T+1}, 5, v{T+2}
v_add_u32 v20, s37, v{T+2}
v_lshrrev_b32 v{T+2}, 3, v0
v_and_b32 v{T+3}, 7, v0
v_lshlrev_b32 v{T+3}, 4, v{T+3}
v_lshl_add_u32 v22, v{T+2}, 12, v{T+3}
v_mul_u32_u24 v{T+2}, 144, v{T+2}
v_add3_u32 v21, v{T+2}, v{T+3}, s37
s_lshl_b32 s38, s3, 18
s_lshl_b32 s39, s35, 7
s_add_u32 s38, s38, s39
s_add_u32 s38, s38, {XT_OFF}
s_waitcnt vmcnt(0)
;STAMP 1
""")
    for c in range(4):
        for t in range(4):
            a(f"ds_read_b64_tr_b16 {vr(XT+8*c+2*t,2)}, v{RD+(t^c)} offset:{512*t}")
    a("s_waitcnt lgkmcnt(0)")
    for c in range(4):
        for i in range(2):
            a(f"ds_write_b128 v20, {vr(XT+8*c+4*i,4)} offset:{16*144*c+16*i}")
    for i in range(8):
        a(f"ds_read_b128 {vr(XT+4*i,4)}, v21 offset:{8*144*i}")
    for i in range(8):
        a(f"s_waitcnt lgkmcnt({7-i})")
        a(f"buffer_store_dwordx4 {vr(XT+4*i,4)}, v22, s[12:15], s38 offen sc1")
        if i < 7: a("s_add_u32 s38, s38, 32768")
    a("s_branch T_st\nT_w7:")
    ticket(a)
    a(f"T_st:\nglobal_load_dwordx2 {vr(TK,2)}, v{Z}, s[48:49] sc1\ns_waitcnt vmcnt(0)")
    F.token_finish(a, "T_tok", TK, Z)
    a(f"""
;STAMP 0
s_add_u32 s39, s61, {FQ_OFF}
s_barrier
s_cmp_lg_u32 s3, 0
s_cbranch_scc1 T_np
""")
    F.publish8(a, TK, T + 2, "s39")
    a("T_np:\ns_barrier\ns_cmp_lg_u32 s3, 7\ns_cbranch_scc1 T_g\ns_waitcnt lgkmcnt(0)")
    put_role(a, T + 2, Z)
    a(f"""
T_g:
v_and_b32 v{T+2}, 7, v0
v_lshlrev_b32 v{T+2}, 4, v{T+2}
s_mul_i32 s38, s3, {8*896}
v_add3_u32 v{T+3}, v4, v{T+2}, s38
""")
    for i in range(7):
        a(f"global_load_dwordx4 {vr(X+4*i,4)}, v{T+3}, s[4:5] offset:{128*i}")
        a(f"global_load_dwordx4 {vr(W+4*i,4)}, v{T+2}, s[28:29] offset:{128*i}")
    a("v_mov_b32 v23, 0\ns_waitcnt vmcnt(0)")
    for i in range(28):
        a(f"v_dot2c_f32_bf16 v23, v{X+i}, v{W+i}")
    a(f"""
s_nop 2
v_add_f32_dpp v23, v23, v23 quad_perm:[1,0,3,2] row_mask:0xf bank_mask:0xf
s_nop 1
v_add_f32_dpp v23, v23, v23 quad_perm:[2,3,0,1] row_mask:0xf bank_mask:0xf
s_nop 1
v_add_f32_dpp v23, v23, v23 row_half_mirror row_mask:0xf bank_mask:0xf
v_mul_f32 v23, {hex(f2u(-LOG2E))}, v23
v_exp_f32 v23, v23
v_lshlrev_b32 v{T}, 2, v{T}
v_add_f32 v23, 1.0, v23
v_rcp_f32 v23, v23
s_lshl_b32 s36, s3, 5
s_add_u32 s36, s36, {G_OFF}
s_mov_b32 exec_lo, 0x01010101
s_mov_b32 exec_hi, 0x01010101
buffer_store_dword v23, v{T}, s[12:15], s36 offen sc1
s_mov_b64 exec, -1
s_waitcnt vmcnt(0)
s_barrier
s_cmp_lt_u32 s3, 4
s_cbranch_scc1 L_attn
s_sub_u32 s3, s3, 4
s_cmp_lg_u32 s3, 0
s_cbranch_scc1 T_w
s_add_u32 s41, s61, {FY_OFF}
""")
    F.publish8(a, TK, T, "s41")
    a("T_w:\ns_barrier\ns_branch X_tail_wo")
```

```python
import sys, os, re
from asmlib import *
from layout import *
import gen as G
import fused
def build():
    h = G.header()
    h += f"; @launch grid=(256,1,1) block=(512,1,1) lds={fused.LDS_BYTES}\n"
    h += '.amdgcn_target "amdgcn-amd-amdhsa--gfx950"\n.text\n'
    a = Asm()
    a(f".globl {fused.NAME}\n.type {fused.NAME},@function")
    fused.gen(a)
    t = a.text()
    VAR = os.environ.get("VAR", "")
    if "kgnolds" in VAR:
        i0 = t.index("X_pass:"); i1 = t.index("s_cbranch_scc1 X_pass")
        t = t[:i0] + re.sub(r".*ds_(read|write).*\n", "", t[i0:i1]) + t[i1:]
    if "kgnowr" in VAR:
        i0 = t.index("X_pass:"); i1 = t.index("s_cbranch_scc1 X_pass")
        t = t[:i0] + re.sub(r".*ds_write.*\n", "", t[i0:i1]) + t[i1:]
    if "kgnord" in VAR:
        i0 = t.index("X_pass:"); i1 = t.index("s_cbranch_scc1 X_pass")
        t = t[:i0] + re.sub(r".*ds_read.*\n", "", t[i0:i1]) + t[i1:]
    if "kgw32" in VAR:
        t = t.replace("X_pass:\n", "X_pass:\n    v_lshl_add_u32 v200, v0, 2, s43\n").replace("ds_write_addtid_b32 ", "ds_write_b32 v200, ")
    if "kgnomfma" in VAR:
        i0 = t.index("X_pass:"); i1 = t.index("s_cbranch_scc1 X_pass")
        t = t[:i0] + re.sub(r".*v_mfma.*\n", "", t[i0:i1]) + t[i1:]
    if "gnodma" in VAR:
        i0 = t.index("G_loop:"); i1 = t.index("s_cbranch_scc1 G_loop")
        t = t[:i0] + re.sub(r".*buffer_load.*\n", "", t[i0:i1]) + t[i1:]
    if "gnords" in VAR:
        i0 = t.index("G_loop:"); i1 = t.index("s_cbranch_scc1 G_loop")
        t = t[:i0] + re.sub(r".*ds_read.*\n", "", t[i0:i1]) + t[i1:]
    if "gnomfma" in VAR:
        i0 = t.index("G_loop:"); i1 = t.index("s_cbranch_scc1 G_loop")
        t = t[:i0] + re.sub(r".*v_mfma.*\n", "", t[i0:i1]) + t[i1:]
    if "noaux" in VAR:
        t = t.replace(";STAMP 6\n    ds_write_addtid", "    s_endpgm\n    ds_write_addtid", 1).replace("s_cbranch_scc1 O_noy", "s_branch O_noy")
    if "anowait" in VAR:
        i0 = t.index("A_loop:"); i1 = t.index("s_cbranch_scc1 A_loop")
        t = t[:i0] + re.sub(r"s_waitcnt vmcnt\(\d+\)", "s_nop 0", t[i0:i1]) + t[i1:]
    if "anold" in VAR:
        i0 = t.index("A_loop:"); i1 = t.index("s_cbranch_scc1 A_loop")
        t = t[:i0] + re.sub(r"buffer_load.*", "s_nop 0", t[i0:i1]) + t[i1:]
    if "astamp" in VAR:
        t = t.replace(";STAMPI\n", "").replace("A_loop:\n", "A_loop:\n;STAMPI\n").replace("s_cbranch_scc1 A_loop\n", "s_cbranch_scc1 A_loop\n;STAMPI\n")
    if "prio0" in VAR: t = t.replace("s_setprio 2", "s_setprio 0")
    if "noslow" in VAR: t = t.replace("s_cbranch_vccnz L_slow", "s_nop 0")
    if os.environ.get("DBGT"):
        idx = {"1": 0, "2": 1, "3": 2, "4": 3, "5": 4, "7": 5, "8": 6}
        i1 = t.index("L_aux:")
        head = t[:i1]
        def st(m):
            k = m.group(1)
            return f"    s_memrealtime s[88:89]\n    s_waitcnt lgkmcnt(0)\n    s_mov_b32 s{70+idx[k]}, s88\n" if k in idx else ""
        head = re.sub(r"^\s*;STAMP (\d+).*\n", st, head, flags=re.M)
        fin = "    s_waitcnt vmcnt(0)\n    s_memrealtime s[88:89]\n    s_waitcnt lgkmcnt(0)\n    s_mov_b32 s77, s88\n    s_mov_b32 s78, s64\n    s_cmp_lg_u32 s3, 0\n    s_cbranch_scc1 L_end\n    s_cmp_eq_u32 s51, 0\n    s_cbranch_scc1 L_end\n    s_mov_b64 exec, 1\n    v_mov_b32 v0, 0\n"
        for k in range(9):
            fin += f"    s_sub_u32 s80, s{70+k}, s62\n    s_add_u32 s80, s80, 100\n    v_mov_b32 v1, s80\n    global_atomic_umax v0, v1, s[48:49] offset:{16+4*k} sc1\n"
        j = head.rindex("    s_endpgm\n")
        head = head[:j] + fin + head[j:]
        t = head + t[i1:]
    t = G.instrument(t, fused.NAME, 0) if G.STAMP else re.sub(r"^\s*;STAMP.*\n", "", t, flags=re.M)
    check_hazards(t)
    return h + t + '.section .rodata,"a"\n' + kd(fused.NAME, fused.VGPRS, extra="  .amdhsa_ieee_mode 0\n")
out = sys.argv[1] if len(sys.argv) > 1 else f"cdna_kernels/{G.NAME}.s"
open(out, "w").write(build())
```

```python
import sys, os, re
from asmlib import *
from layout import *
import gen as G
import fused
def build():
    h = G.header()
    h += f"; @launch grid=(256,1,1) block=(512,1,1) lds={fused.LDS_BYTES}\n"
    h += '.amdgcn_target "amdgcn-amd-amdhsa--gfx950"\n.text\n'
    a = Asm()
    a(f".globl {fused.NAME}\n.type {fused.NAME},@function")
    fused.gen(a)
    t = a.text()
    VAR = os.environ.get("VAR", "")
    if "kgnolds" in VAR:
        i0 = t.index("X_pass:"); i1 = t.index("s_cbranch_scc1 X_pass")
        t = t[:i0] + re.sub(r".*ds_(read|write).*\n", "", t[i0:i1]) + t[i1:]
    if "kgnowr" in VAR:
        i0 = t.index("X_pass:"); i1 = t.index("s_cbranch_scc1 X_pass")
        t = t[:i0] + re.sub(r".*ds_write.*\n", "", t[i0:i1]) + t[i1:]
    if "kgnord" in VAR:
        i0 = t.index("X_pass:"); i1 = t.index("s_cbranch_scc1 X_pass")
        t = t[:i0] + re.sub(r".*ds_read.*\n", "", t[i0:i1]) + t[i1:]
    if "kgw32" in VAR:
        t = t.replace("X_pass:\n", "X_pass:\n    v_lshl_add_u32 v200, v0, 2, s43\n").replace("ds_write_addtid_b32 ", "ds_write_b32 v200, ")
    if "kgnomfma" in VAR:
        i0 = t.index("X_pass:"); i1 = t.index("s_cbranch_scc1 X_pass")
        t = t[:i0] + re.sub(r".*v_mfma.*\n", "", t[i0:i1]) + t[i1:]
    if "gnodma" in VAR:
        i0 = t.index("G_loop:"); i1 = t.index("s_cbranch_scc1 G_loop")
        t = t[:i0] + re.sub(r".*buffer_load.*\n", "", t[i0:i1]) + t[i1:]
    if "gnords" in VAR:
        i0 = t.index("G_loop:"); i1 = t.index("s_cbranch_scc1 G_loop")
        t = t[:i0] + re.sub(r".*ds_read.*\n", "", t[i0:i1]) + t[i1:]
    if "gnomfma" in VAR:
        i0 = t.index("G_loop:"); i1 = t.index("s_cbranch_scc1 G_loop")
        t = t[:i0] + re.sub(r".*v_mfma.*\n", "", t[i0:i1]) + t[i1:]
    if "noaux" in VAR:
        t = t.replace(";STAMP 6\n    ds_write_addtid", "    s_endpgm\n    ds_write_addtid", 1).replace("s_cbranch_scc1 O_noy", "s_branch O_noy")
    if "anowait" in VAR:
        i0 = t.index("A_loop:"); i1 = t.index("s_cbranch_scc1 A_loop")
        t = t[:i0] + re.sub(r"s_waitcnt vmcnt\(\d+\)", "s_nop 0", t[i0:i1]) + t[i1:]
    if "anold" in VAR:
        i0 = t.index("A_loop:"); i1 = t.index("s_cbranch_scc1 A_loop")
        t = t[:i0] + re.sub(r"buffer_load.*", "s_nop 0", t[i0:i1]) + t[i1:]
    if "astamp" in VAR:
        t = t.replace(";STAMPI\n", "").replace("A_loop:\n", "A_loop:\n;STAMPI\n").replace("s_cbranch_scc1 A_loop\n", "s_cbranch_scc1 A_loop\n;STAMPI\n")
    if "prio0" in VAR: t = t.replace("s_setprio 2", "s_setprio 0")
    if "noslow" in VAR: t = t.replace("s_cbranch_vccnz L_slow", "s_nop 0")
    if os.environ.get("DBGX"):
        k = os.environ["DBGX"]
        i1 = t.index("L_aux:")
        head = t[:i1]
        st_ = "    s_memrealtime s[88:89]\n    s_waitcnt lgkmcnt(0)\n    s_mov_b32 s70, s88\n"
        if k == "none": fin = "    s_mov_b32 s70, s62\n"
        elif k == "start": fin = "    s_mov_b32 s70, s64\n"
        elif k == "end": fin = "    s_waitcnt vmcnt(0)\n" + st_
        else:
            fin = ""
            head = re.sub(r"^\s*;STAMP " + k + r"\b.*\n", st_, head, flags=re.M)
            t = t.replace("L_gate:\n", "L_gate:\n    s_waitcnt lgkmcnt(0)\n    s_mov_b32 s70, s64\n")
        fin += "    s_add_u32 s70, s70, 4000\nD_spin:\n    s_memrealtime s[88:89]\n    s_waitcnt lgkmcnt(0)\n    s_sub_u32 s71, s88, s70\n    s_cmp_gt_i32 s71, 0\n    s_cbranch_scc0 D_spin\n"
        j = head.rindex("    s_endpgm\n")
        head = head[:j] + fin + head[j:]
        t = head + t[t.index("L_aux:"):]
    if os.environ.get("DBGT"):
        idx = {"1": 0, "2": 1, "3": 2, "4": 3, "5": 4, "7": 5, "8": 6}
        i1 = t.index("L_aux:")
        head = t[:i1]
        def st(m):
            k = m.group(1)
            return f"    s_memrealtime s[88:89]\n    s_waitcnt lgkmcnt(0)\n    s_mov_b32 s{70+idx[k]}, s88\n" if k in idx else ""
        head = re.sub(r"^\s*;STAMP (\d+).*\n", st, head, flags=re.M)
        fin = "    s_waitcnt vmcnt(0)\n    s_memrealtime s[88:89]\n    s_waitcnt lgkmcnt(0)\n    s_mov_b32 s77, s88\n    s_mov_b32 s78, s64\n    s_cmp_lg_u32 s3, 0\n    s_cbranch_scc1 L_end\n    s_cmp_eq_u32 s51, 0\n    s_cbranch_scc1 L_end\n    s_mov_b64 exec, 1\n    v_mov_b32 v0, 0\n"
        for k in range(9):
            fin += f"    s_sub_u32 s80, s{70+k}, s62\n    s_add_u32 s80, s80, 100\n    v_mov_b32 v1, s80\n    global_atomic_umax v0, v1, s[48:49] offset:{16+4*k} sc1\n"
        j = head.rindex("    s_endpgm\n")
        head = head[:j] + fin + head[j:]
        t = head + t[i1:]
    t = G.instrument(t, fused.NAME, 0) if G.STAMP else re.sub(r"^\s*;STAMP.*\n", "", t, flags=re.M)
    check_hazards(t)
    return h + t + '.section .rodata,"a"\n' + kd(fused.NAME, fused.VGPRS, extra="  .amdhsa_ieee_mode 0\n")
out = sys.argv[1] if len(sys.argv) > 1 else f"cdna_kernels/{G.NAME}.s"
open(out, "w").write(build())
```

```python
from asmlib import *
from layout import *
import os
NAME = "gated_mix__mha_block__ssm_conv_s4d__prompt_kernel"
SPIN = 400000
VAR = os.environ.get("VAR", "")
CH_AREA = 30720
TB0 = 22016; TAB = TB0 + 32; TABK = 13; SUM = 8448 + 32; CPY = 0; KG_AREA = 8704; XP = 17408
YG = 49152; YG_SLOT = 2304
MISC = 61440
RING = 65536
WO_B = 65536; VR = 122880; VSLOT = 2368; VWAVE = 4 * VSLOT
LDS_BYTES = 163840
VGPRS = 256
SL = 272

def spin_global(a, lab, dst2, vaddr, soff, mask, cnt="s60"):
    lo, hi = mask & 0xffffffff, mask >> 32
    a(f"""
s_mov_b32 {cnt}, 0
s_mov_b32 exec_lo, {hex(lo)}
s_mov_b32 exec_hi, {hex(hi)}
{lab}:
buffer_load_dwordx2 {vr(dst2,2)}, v{vaddr}, s[12:15], {soff} offen sc1
s_add_u32 {cnt}, {cnt}, 1
s_cmp_gt_u32 {cnt}, {SPIN}
s_cbranch_scc1 L_end
s_waitcnt vmcnt(0)
v_cmp_ne_u64 vcc, {vr(dst2,2)}, s[62:63]
s_and_b64 exec, exec, vcc
s_cbranch_scc1 {lab}
s_mov_b64 exec, -1
""")

def spin_lds(a, lab, vaddr, off, val, tmp, cnt="s60"):
    a(f"""
s_mov_b32 {cnt}, 0
{lab}:
ds_read_b32 v{tmp}, v{vaddr} offset:{off}
s_add_u32 {cnt}, {cnt}, 1
s_cmp_gt_u32 {cnt}, {SPIN*8}
s_cbranch_scc1 L_end
s_waitcnt lgkmcnt(0)
v_cmp_ne_u32 vcc, {val}, v{tmp}
s_cbranch_vccnz {lab}
""")

def token_issue(a, t2, z):
    a(f"v_mov_b32 v{z}, 0\nglobal_load_dwordx2 {vr(t2,2)}, v{z}, s[48:49] sc1")

def token_finish(a, lab, t2, z):
    a(f"""
s_mov_b32 s60, 0
{lab}:
v_readfirstlane_b32 s62, v{t2}
v_readfirstlane_b32 s63, v{t2+1}
s_cmp_lg_u64 s[62:63], 0
s_cbranch_scc1 {lab}_ok
global_load_dwordx2 {vr(t2,2)}, v{z}, s[48:49] sc1
s_add_u32 s60, s60, 1
s_cmp_gt_u32 s60, {SPIN}
s_cbranch_scc1 L_end
s_waitcnt vmcnt(0)
s_branch {lab}
{lab}_ok:
""")

def publish8(a, t2, tmp, soff):
    if "pubfull" not in VAR:
        a(f"""
v_lshlrev_b32 v{tmp}, 15, v0
s_mov_b64 exec, 0xff
buffer_store_dwordx2 {vr(t2,2)}, v{tmp}, s[12:15], {soff} offen sc1
s_mov_b64 exec, -1
""")
        return
    a(f"""
v_lshrrev_b32 v{tmp}, 3, v0
v_mul_u32_u24 v{tmp}, {32768-128}, v{tmp}
v_add_u32 v{tmp}, v{tmp}, v1
buffer_store_dwordx4 {vr(t2,4)}, v{tmp}, s[12:15], {soff} offen sc1
""")

def get_role(a, lab, z, tmp):
    a(f"""
s_mov_b32 s60, 0
{lab}:
ds_read_b32 v{tmp}, v{z} offset:{MISC+8}
s_add_u32 s60, s60, 1
s_cmp_gt_u32 s60, {SPIN*8}
s_cbranch_scc1 L_end
s_waitcnt lgkmcnt(0)
v_readfirstlane_b32 s69, v{tmp}
s_cmp_eq_u32 s69, 0
s_cbranch_scc1 {lab}
s_sub_u32 s69, s69, 1
""")

def gen(a):
    a(f"""
.p2align 8
{NAME}:
s_cmp_ge_u32 s2, 256
s_cbranch_scc1 L_end
s_load_dwordx2 s[4:5], s[0:1], 0
s_load_dwordx2 s[8:9], s[0:1], 8
s_load_dwordx2 s[12:13], s[0:1], 104
s_load_dwordx16 s[16:31], s[0:1], 32
s_load_dwordx2 s[48:49], s[0:1], 96
s_load_dwordx2 s[52:53], s[0:1], 16
s_load_dwordx2 s[56:57], s[0:1], 88
s_memrealtime s[64:65]
v_lshrrev_b32 v1, 6, v0
v_and_b32 v0, 63, v0
v_readfirstlane_b32 s3, v1
s_mov_b32 s6, {2048*896}
s_mov_b32 s7, 0x20000
s_mov_b32 s10, {448*2688}
s_mov_b32 s11, 0x20000
s_mov_b32 s14, {WS_BYTES}
s_mov_b32 s15, 0x20000
s_mov_b32 s54, {448*896}
s_mov_b32 s55, 0x20000
s_mov_b32 s58, {2048*896}
s_mov_b32 s59, 0x20000
v_lshlrev_b32 v1, 4, v0
v_and_b32 v2, 31, v0
v_lshrrev_b32 v3, 5, v0
s_bfe_u32 s32, s2, 0x20003
s_and_b32 s34, s2, 4
s_add_u32 s34, s34, s32
s_lshr_b32 s33, s2, 5
s_and_b32 s35, s2, 3
s_lshl3_add_u32 s35, s35, s33
s_lshl_b32 s61, s34, 5
s_add_u32 s61, s61, s35
s_lshl_b32 s61, s61, 7
s_getreg_b32 s68, hwreg(HW_REG_XCC_ID, 0, 3)
s_cmp_eq_u32 s34, 7
s_cbranch_scc1 L_gate
s_cmp_ge_u32 s3, 4
s_cbranch_scc1 L_aux
""")
    gemm(a)
    attn(a)
    outproj(a)
    aux(a)
    gate(a)
    slow(a)
    a("L_end:\ns_endpgm\nL_code_end:")

def gemm(a):
    XA0, XA1, WA = 4, 5, 6
    XR, WR = 104, 108
    SA = 110
    XC, WC = 14, 18
    T0, T1, T2 = 20, 21, 22
    FW, FP, FV, FI = 13, 19, 23, 20
    FA, FB = 24, 40
    ACC = 56
    a(f"""
s_setprio 2
v_lshrrev_b32 v{T0}, 3, v0
s_lshl_b32 s36, s35, 6
s_lshl_b32 s37, s3, 4
s_add_u32 s36, s36, s37
v_add_u32 v{T0}, s36, v{T0}
v_mul_u32_u24 v{T0}, 896, v{T0}
v_lshrrev_b32 v{T1}, 4, v0
v_xor_b32 v{T1}, v{T1}, v0
v_and_b32 v{T1}, 7, v{T1}
v_lshl_add_u32 v{XA0}, v{T1}, 4, v{T0}
v_xor_b32 v{T1}, 4, v{T1}
v_lshl_add_u32 v{XA1}, v{T1}, 4, v{T0}
v_add_u32 v{XA1}, {8*896 - 1024}, v{XA1}
v_lshrrev_b32 v{T0}, 2, v0
v_add_u32 v{T0}, s37, v{T0}
v_mul_u32_u24 v{T0}, 2688, v{T0}
v_and_b32 v{T1}, 3, v0
v_lshl_add_u32 v{WA}, v{T1}, 4, v{T0}
; first sigma = ((r>>2) + 2*(r&3)) % 7
s_lshl1_add_u32 s39, s32, s33
s_cmp_ge_u32 s39, 7
s_cselect_b32 s38, 7, 0
s_sub_u32 s39, s39, s38
{"s_mov_b32 s39, 0" if "rot0" in VAR else ""}
{"s_and_b32 s39, s33, 1" if "rot2" in VAR else ""}
{"s_mul_i32 s39, s39, 3" if "rot2" in VAR else ""}
s_mul_i32 s40, s34, 384
s_lshl_b32 s41, s3, 11
s_add_u32 s41, s41, {RING}
s_mov_b32 s38, s41
s_lshl_b32 s42, s3, 10
s_sub_u32 s42, {8192}, s42
s_mov_b32 s43, 0
s_lshl_b32 s46, s39, 7
s_mul_i32 s47, s39, {64*2688}
s_add_u32 s47, s47, s40
s_waitcnt lgkmcnt(0)
""")
    if "pf" in VAR:
        a(f"""
v_lshlrev_b32 v{T0}, 7, v0
s_cmp_eq_u32 s3, 0
s_cbranch_scc0 G_pf1
s_lshl_b32 s36, s61, 6
buffer_load_dword v{T2}, v{T0}, s[4:7], s36 offen
G_pf1:
s_cmp_eq_u32 s3, 1
s_cbranch_scc0 G_pf2
s_mul_i32 s36, s61, 42
buffer_load_dword v{T2}, v{T0}, s[8:11], s36 offen
G_pf2:
""")
        if "pfw" in VAR: a("s_waitcnt vmcnt(0)")
    a("s_barrier")
    if "pfw" in VAR: a(";STAMP 2")
    dma = [f"buffer_load_dwordx4 v{XA0}, s[4:7], s46 offen lds",
           f"buffer_load_dwordx4 v{XA1}, s[4:7], s46 offen offset:1024 lds"] + \
          [f"buffer_load_dwordx4 v{WA}, s[8:11], s47 offen offset:{64*ct} lds" for ct in range(6)]
    pre = ["s_mov_b32 m0, s41", None, "s_add_u32 m0, s41, s42"] + [f"s_add_u32 m0, m0, {4096-64}"] * 5
    adv = ["s_add_u32 s46, s46, 128", f"s_add_u32 s47, s47, {64*2688}", "s_cmp_eq_u32 s46, 896",
           "s_cselect_b32 s46, 0, s46", "s_cselect_b32 s47, s40, s47"]
    a("G_pro:")
    for p, d in zip(pre, dma):
        if p: a(p + "\ns_nop 0")
        a(d)
    a("\n".join(adv))
    a(f"""
s_add_u32 s41, s41, 32768
s_add_u32 s43, s43, 1
s_cmp_lt_u32 s43, {3 if "pro3" in VAR else 2}
s_cbranch_scc1 G_pro
;STAMP 0
s_and_b32 s44, s3, 1
s_lshr_b32 s45, s3, 1
v_bfe_u32 v{T2}, v0, 1, 3
v_xor_b32 v{T2}, v{T2}, v3
v_lshlrev_b32 v{T2}, 4, v{T2}
v_lshl_add_u32 v{T2}, v2, 7, v{T2}
s_lshl_b32 s36, s44, 12
s_add_u32 s36, s36, {RING}
v_add_u32 v{XR}, s36, v{T2}
v_xor_b32 v{XR+1}, 32, v{XR}
v_xor_b32 v{XR+2}, 64, v{XR}
v_xor_b32 v{XR+3}, 96, v{XR}
v_bfe_u32 v{T0}, v0, 2, 2
v_lshl_add_u32 v{T0}, v3, 3, v{T0}
v_lshlrev_b32 v{T0}, 6, v{T0}
v_and_b32 v{T2}, 16, v0
v_lshl_add_u32 v{T0}, v{T2}, 1, v{T0}
v_lshl_add_u32 v7, v{T1}, 3, v{T0}
s_mul_i32 s36, s45, 12288
s_add_u32 s36, s36, {RING+8192}
v_add_u32 v{WR}, s36, v7
""")
    for i in range(5):
        a(f"v_mov_b32 v{XC+i}, v{XR+i}")
    for i in list(range(4)) + list(range(12, 80)):
        a(f"v_mov_b32 v{FA+i}, 0")
    a(f"""
s_mov_b32 s43, 0
s_mov_b32 s50, 0
v_mov_b32 v10, 0
v_mul_u32_u24 v{T0}, {512+64}, v3
v_lshlrev_b32 v{T1}, 4, v2
v_xor_b32 v{SA}, v{T0}, v{T1}
v_xor_b32 v{SA+1}, 128, v{SA}
s_lshl1_add_u32 s28, s35, s44
s_mul_i32 s28, s28, {QKV_T}
s_lshl1_add_u32 s37, s34, s45
s_mul_i32 s37, s37, 3
s_lshl_b32 s29, s37, 11
s_add_u32 s28, s28, s29
s_add_u32 s29, s28, 4096
s_mov_b32 s30, {hex(f2u(QSCALE))}
""")
    rX = lambda u, F: [f"ds_read_b128 {vr(F,4)}, v{XC+u}"]
    rW = lambda u, F, c: [f"ds_read_b64_tr_b16 {vr(F+4+4*c+2*t,2)}, v{WC} offset:{c*4096+u*1024+t*256}" for t in range(2)]
    def mf(F, c):
        a(f"v_mfma_f32_32x32x16_bf16 {vr(ACC+16*c,16)}, {vr(F+4+4*c,4)}, {vr(F,4)}, {vr(ACC+16*c,16)}")
    seq = [(FA, 2), (FB, 0), (FB, 1), (FB, 2), (FA, 0), (FA, 1), (FA, 2), (FB, 0), (FB, 1), (FB, 2), (FA, 0), (FA, 1)]
    def body(with_dma):
        side = [rX(0, FA) + rW(0, FA, 0) + rW(0, FA, 1),
                rW(0, FA, 2) + rW(1, FB, 0), rW(1, FB, 1), rW(1, FB, 2) + rX(1, FB),
                rW(2, FA, 0), rW(2, FA, 1), rW(2, FA, 2) + rX(2, FA),
                rW(3, FB, 0), rW(3, FB, 1), rW(3, FB, 2) + rX(3, FB), [], []]
        side[0].insert(0, "s_add_u32 s43, s43, 1")
        if with_dma:
            for i in range(8):
                if pre[i]: side[1 + i].insert(0, pre[i])
                side[1 + i].append(dma[i])
            side[4] += ["s_add_u32 s41, s38, s50", "s_add_u32 s50, s50, 32768"]
            side[5] += ["s_cmp_eq_u32 s50, 98304", "s_cselect_b32 s50, 0, s50"]
            side[7] += [adv[0]]
            side[9] = [adv[1]] + side[9] + adv[2:]
            side[10] = [f"v_add_u32 v{XC+i}, s50, v{XR+i}" for i in range(5)]
            side[11] = ["s_cmp_lt_u32 s43, 5"]
        else:
            side[10] = [f"v_mov_b32 v{XC+i}, v{XR+i}" for i in range(5)]
            side[11] = ["s_cmp_lt_u32 s43, 7"]
        a("s_barrier\n;STAMPI")
        for n, (F, c) in enumerate(seq):
            if n in (4, 7, 10): a("s_waitcnt lgkmcnt(7)")
            mf(F, c)
            for x in side[n]: a(x)
    a("s_waitcnt vmcnt(8)\n.p2align 3\nG_loop:")
    body(True)
    a("s_waitcnt vmcnt(8) lgkmcnt(0)\ns_cbranch_scc1 G_loop\nglobal_load_dwordx2 v[8:9], v10, s[48:49] sc1\nG_loop2:")
    body(False)
    a("s_waitcnt vmcnt(0) lgkmcnt(0)\ns_cbranch_scc1 G_loop2")
    mf(FB, 0)
    if "nob8" not in VAR: a("s_barrier")
    mf(FB, 1); mf(FA, 2); mf(FB, 2)
    a("s_nop 6")
    for c in range(3):
        A = ACC + 16*c
        a(f"s_cmp_lt_u32 s37, {14-c}\ns_cbranch_scc0 G_noscale{c}")
        for i in range(8):
            a(f"v_pk_mul_f32 {vr(A+2*i,2)}, {vr(A+2*i,2)}, s[30:31] op_sel_hi:[1,0]")
        a(f"G_noscale{c}:")
        for p in range(2):
            for i in range(4*p, 4*p + 4):
                a(f"v_cvt_pk_bf16_f32 v{A+i}, v{A+2*i}, v{A+2*i+1}")
        for p in range(2):
            a(f"v_permlane32_swap_b32 v{A+4*p}, v{A+4*p+2}\nv_permlane32_swap_b32 v{A+4*p+1}, v{A+4*p+3}")
        for p in range(2):
            a(f"buffer_store_dwordx4 {vr(A+4*p,4)}, v{SA+p}, s[12:15], s{28 + c//2} offen offset:{1024*p + 2048*(c%2)} sc1")
    a(";STAMP 10")

KA, VA, TT = 4, 12, 16
VF, P, Q, S, O, KF = 24, 32, 40, [72, 88], 104, 168
NM = 120
OK_ = O + 48
TK, Z = 8, 10
VS = 6
PT = 14

def rdV(a, slot, u):
    for t in range(2):
        a(f"ds_read_b64_tr_b16 {vr(VF+4*u+2*t,2)}, v{VA+t} offset:{slot*VSLOT+256*u}")
def qk(a, Sx, kb, q, u, c0="0"):
    c = c0 if u == 0 else vr(Sx, 16)
    a(f"v_mfma_f32_32x32x16_bf16 {vr(Sx,16)}, {vr(KF+8*kb+4*u,4)}, {vr(Q+8*q+4*u,4)}, {c}")
def pv(a, q, u):
    a(f"v_mfma_f32_32x32x16_bf16 {vr(O+16*q,16)}, {vr(VF+4*u,4)}, {vr(P+4*u,4)}, {vr(O+16*q,16)}")

def attn(a):
    T = TT
    a(f"""
v_mov_b32 v{T+1}, 1
s_waitcnt vmcnt(0)
;STAMP 2
s_mov_b64 exec, 1
ds_add_rtn_u32 v{T+1}, v{Z}, v{T+1} offset:{MISC}
s_mov_b64 exec, -1
""")
    token_finish(a, "A_tok", TK, Z)
    a(f"""
s_add_u32 s41, s61, {FQ_OFF}
s_waitcnt lgkmcnt(0)
v_readfirstlane_b32 s23, v{T+1}
s_cmp_lg_u32 s23, 3
s_cbranch_scc1 A_nopub
""")
    publish8(a, TK, T + 1, "s41")
    a("A_nopub:\ns_setprio 0\n;STAMP 11")
    a("L_attn:")
    for i in range(64):
        a(f"v_mov_b32 v{O+i}, 0")
    for i in range(4):
        a(f"v_mov_b32 v{P+4+i}, 0\nv_mov_b32 v{VF+4+i}, 0")
        for k in (0, 1, 6, 7): a(f"v_mov_b32 v{Q+8*i+k}, 0")
    get_role(a, "A_role", Z, T)
    a(f"""
s_and_b32 s36, s69, 15
s_and_b32 s39, s69, 1
s_lshr_b32 s37, s69, 4
s_mul_i32 s38, s36, 7
s_lshr_b32 s38, s38, 1
v_lshlrev_b32 v{T}, 4, v2
v_add_u32 v{T+1}, s38, v3
v_and_b32 v{T+1}, 3, v{T+1}
v_lshlrev_b32 v{T+1}, 6, v{T+1}
v_xor_b32 v{T+1}, v{T+1}, v{T}
v_lshl_add_u32 v{KA}, v3, 9, v{T+1}
v_xor_b32 v{KA+1}, 128, v{KA}
s_mul_i32 s40, s3, {VWAVE}
s_add_u32 s40, s40, {VR}
v_bfe_u32 v{T}, v0, 4, 1
v_bfe_u32 v{T+1}, v0, 1, 1
v_lshl_add_u32 v{T}, v{T}, 1, v{T+1}
v_bfe_u32 v{T+1}, v0, 2, 2
v_lshl_add_u32 v{T+1}, v3, 2, v{T+1}
v_lshlrev_b32 v{T+1}, 4, v{T+1}
v_add_u32 v{T+2}, s38, v{T}
v_and_b32 v{T+2}, 3, v{T+2}
v_lshlrev_b32 v{T+2}, 6, v{T+2}
v_xor_b32 v{T+1}, v{T+1}, v{T+2}
v_lshl_add_u32 v{T+1}, v{T}, 9, v{T+1}
v_and_b32 v{T+2}, 1, v0
v_lshl_add_u32 v{T+1}, v{T+2}, 3, v{T+1}
v_xor_b32 v{T+2}, 128, v{T+1}
s_movk_i32 s41, 0x1111
s_cmp_eq_u32 s39, 0
s_cselect_b32 exec_lo, 0x88880000, s41
s_mov_b32 exec_hi, exec_lo
v_mov_b32 v{T+1}, 2048
v_mov_b32 v{T+2}, 2048
s_mov_b64 exec, -1
v_add_u32 v{VA}, s40, v{T+1}
v_add_u32 v{VA+1}, s40, v{T+2}
v_lshrrev_b32 v{T}, 1, v0
v_mul_u32_u24 v{T}, {VSLOT}, v{T}
v_and_b32 v{T+1}, 1, v0
v_lshl_add_u32 v{T}, v{T+1}, 8, v{T}
v_add_u32 v{T}, s40, v{T}
v_mov_b32 v{T+2}, 0x3f80
v_mov_b32 v{T+3}, 0
s_mov_b64 exec, 0xff
ds_write_b64 v{T}, {vr(T+2,2)} offset:2048
s_mov_b64 exec, -1
v_bfe_u32 v{T}, v0, 4, 1
v_add_u32 v{T}, 1, v{T}
s_lshl_b32 s41, s3, 3
v_and_b32 v{T+1}, 7, v0
v_add_u32 v{T+1}, s41, v{T+1}
s_lshl_b32 s41, s37, 1
s_mov_b32 exec_lo, 0
v_mov_b32 v{T}, 0
v_and_b32 v{T+1}, 1, v0
v_add_u32 v{T+1}, s41, v{T+1}
s_mov_b32 exec_lo, -1
v_mul_u32_u24 v{T}, 56, v{T}
v_bfe_u32 v{T+2}, v0, 3, 1
v_mad_u32_u24 v{T}, v{T+2}, 3, v{T}
v_add_u32 v{T}, s38, v{T}
v_mul_u32_u24 v{T}, 171, v{T}
v_lshrrev_b32 v{T}, 12, v{T}
v_lshl_add_u32 v{T}, v{T}, 5, v{T+1}
v_lshlrev_b32 v{T}, 7, v{T}
s_mul_i32 s16, s3, {16*QKV_T}
s_add_u32 s41, s38, 56
s_lshl_b32 s41, s41, 9
s_add_u32 s16, s16, s41
s_add_u32 s17, s16, {16*QKV_T}
s_mov_b32 s28, s16
s_and_b32 s18, s68, 3
s_mul_i32 s18, s18, {4*QKV_T}
s_add_u32 s16, s16, s18
v_add_u32 v{VS}, {56*512}, v1
s_mov_b32 s18, s16
s_lshl2_add_u32 s42, s37, s3
s_lshl4_add_u32 s42, s42, s36
s_lshl_b32 s42, s42, 11
s_add_u32 s42, s42, {O_OFF}
s_lshl2_add_u32 s21, s69, s3
s_lshl_b32 s21, s21, 7
s_add_u32 s21, s21, {FO_OFF}
v_mov_b32 v{PT}, s21
s_mov_b64 exec, 0xffff
v_lshl_add_u32 v{PT}, v0, 7, s42
s_mov_b64 exec, -1
s_lshl_b32 s20, s38, 9
""")
    for q in range(4):
        a(f"""
s_add_u32 s41, s3, {q+1}
s_and_b32 s41, s41, 3
s_lshl2_add_u32 s41, s37, s41
s_mul_i32 s41, s41, {QKV_T}
s_add_u32 s{24+q}, s41, s20
""")
    ldK = lambda kb: [f"buffer_load_dwordx4 {vr(KF+8*kb,4)}, v{KA}, s[12:15], s16 offen sc1",
                      f"buffer_load_dwordx4 {vr(KF+8*kb+4,4)}, v{KA+1}, s[12:15], s16 offen offset:1024 sc1"]
    ldV = [f"buffer_load_dwordx4 v{VS}, s[12:15], s16 offen sc1 lds", f"buffer_load_dwordx4 v{VS}, s[12:15], s16 offen offset:1024 sc1 lds"]
    preV = lambda slot: [f"s_add_u32 m0, s40, {slot*VSLOT}"]
    adv = [f"s_add_u32 s16, s16, {QKV_T}"]
    wrap = ["s_cmp_eq_u32 s16, s17", "s_cselect_b32 s16, s28, s16", "s_cmp_eq_u32 s16, s18", "s_cselect_b32 s16, 0x70000000, s16"]
    for x in preV(0): a(x)
    a(f"""
s_lshl_b32 s22, s68, 15
s_add_u32 s22, s22, {FQ_OFF}
""")
    for q in range(3):
        a(f"s_add_u32 s41, s3, {q+1}\ns_and_b32 s41, s41, 3\ns_mul_i32 s41, s41, 12288\nv_add_u32 v{T+4+q}, s41, v1")
    a("s_mov_b32 s43, 0\ns_waitcnt lgkmcnt(0)\n;STAMP 0")
    spin_global(a, "A_spin", T + 2, T, "s22", 0x303ffffffff)
    a(";STAMP 3")
    if "cnt" in VAR: a(";STAMPV 0 s60\n;STAMPV 1 s69")
    for x in ldK(0): a(x)
    def ldQ(q, odd):
        r = Q + 8*q
        if not odd:
            a(f"""
buffer_load_dwordx4 {vr(r,4)}, v{KA}, s[12:15], s{24+q} offen sc1
s_mov_b32 exec_hi, 0
buffer_load_dwordx4 {vr(r+4,4)}, v{KA+1}, s[12:15], s{24+q} offen offset:1024 sc1
s_not_b64 exec, exec
buffer_load_dwordx2 {vr(r+4,2)}, v{KA+1}, s[12:15], s{24+q} offen offset:1024 sc1
s_mov_b32 exec_lo, -1
""")
        else:
            a(f"""
buffer_load_dwordx4 {vr(r+4,4)}, v{KA+1}, s[12:15], s{24+q} offen offset:1024 sc1
s_mov_b32 exec_hi, 0
buffer_load_dwordx2 {vr(r+2,2)}, v{KA}, s[12:15], s{24+q} offen offset:8 sc1
s_not_b64 exec, exec
buffer_load_dwordx4 {vr(r,4)}, v{KA}, s[12:15], s{24+q} offen sc1
s_mov_b32 exec_lo, -1
""")
    a("s_cmp_eq_u32 s39, 0\ns_cbranch_scc0 A_odd")
    for odd in (0, 1):
        if odd: a("s_branch A_z\nA_odd:")
        ldQ(0, odd)
        for x in ldV: a(x)
        for q in range(1, 4): ldQ(q, odd)
    a("A_z:")
    for x in adv: a(x)
    for x in preV(1) + ldK(1) + ldV + adv: a(x)
    a("s_waitcnt vmcnt(13)\n;STAMP 4")
    qk(a, S[0], 0, 0, 0); qk(a, S[0], 0, 0, 1)
    rdV(a, 0, 0)
    for t in range(2, 4):
        for x in preV(t) + ldK(t) + ldV + adv: a(x)
    for x in wrap[:2]: a(x)
    a("s_barrier\n;STAMP 1")
    a(".p2align 3\nA_loop:")
    for t in range(4):
        side = [[[] for _ in range(4)] for _ in range(4)]
        side[0][0] = (["s_waitcnt vmcnt(18)"] if t == 0 else []) + [("V", t, 1)]
        side[0][1] = preV(t)
        side[0][2] = ["s_waitcnt lgkmcnt(2)"]
        side[0][3] = ["s_waitcnt lgkmcnt(0)"]
        side[1][1] = [ldV[0]]
        side[1][2] = [ldV[1]]
        side[2][2] = [ldK(t)[0]]
        side[2][3] = [ldK(t)[1]]
        side[3][0] = ["s_waitcnt vmcnt(12)"]
        side[3][1] = list(adv)
        side[3][3] = [("V", (t + 1) % 4, 0)]
        if t == 0:
            side[1][0] = ["s_waitcnt vmcnt(15)"]
            side[2][0] = ["s_waitcnt vmcnt(14)"]
            side[1][3] = ["s_add_u32 s43, s43, 1"]
        if t == 2:
            side[2][1] = [f"buffer_load_dword v{PT+1}, v{PT}, s[12:15], 0 offen sc1"]
        if t == 3:
            def red(q, chk):
                lab = f"A_nr{q}"
                x = ["s_cbranch_scc1 " + lab]
                if chk: x += [("Y",)]
                return x + [f"ds_write_b128 v{T+4+q}, {vr(O+16*q+4*i,4)} offset:{4096*q+1024*i}" for i in range(4)] + [lab + ":"]
            side[1][0] = ["s_cmp_lt_u32 s43, 4"]
            side[1][3] = red(0, True)
            side[2][1] = ["s_cmp_lt_u32 s43, 4"]
            side[2][3] = side[2][3] + red(1, False)
            side[3][2] = wrap[:2]
            side[3][3] = wrap[2:] + side[3][3] + ["s_cmp_lt_u32 s43, 4"]
        for q in range(4):
            Sc, Sn = S[q % 2], S[(q + 1) % 2]
            kb = t if q < 3 else (t + 1) % 4
            for g in range(4):
                a(f"v_exp_f32 v{Sc+4*g}, v{Sc+4*g}\nv_exp_f32 v{Sc+4*g+1}, v{Sc+4*g+1}")
                if g == 0: pv(a, (q + 3) % 4, 1)
                elif g == 3: pv(a, q, 0)
                else: qk(a, Sn, kb, (q + 1) % 4, g - 1)
                for s in side[q][g]:
                    if s == ("Y",): spin_lds(a, "A_y4", Z, MISC + 4, 4, T + 3)
                    elif isinstance(s, tuple): rdV(a, s[1], s[2])
                    else: a(s)
                a(f"v_exp_f32 v{Sc+4*g+2}, v{Sc+4*g+2}\nv_exp_f32 v{Sc+4*g+3}, v{Sc+4*g+3}")
                a(f"v_cvt_pk_bf16_f32 v{P+2*g}, v{Sc+4*g}, v{Sc+4*g+1}\nv_cvt_pk_bf16_f32 v{P+2*g+1}, v{Sc+4*g+2}, v{Sc+4*g+3}")
    a("s_cbranch_scc1 A_loop\nL_tail:\n;STAMP 5\ns_mul_i32 s41, s3, 12288")
    pv(a, 3, 1)
    for i in range(4):
        a(f"ds_write_b128 v{T+6}, {vr(O+32+4*i,4)} offset:{8192+1024*i}")
    a(f"""
v_add_u32 v{T}, s41, v1
s_waitcnt lgkmcnt(0)
s_barrier
;STAMP 6
""")
    for i in range(12):
        a(f"ds_read_b128 {vr(O+4*i,4)}, v{T} offset:{1024*i}")
    for q in range(3):
        a(f"s_waitcnt lgkmcnt({8-4*q})")
        for i in range(8):
            a(f"v_pk_add_f32 {vr(OK_+2*i,2)}, {vr(OK_+2*i,2)}, {vr(O+16*q+2*i,2)}")
    a(f"""
s_mov_b32 s44, 0
A_norm:
s_cmp_eq_u32 s39, 0
s_cbranch_scc0 A_nodd
v_mov_b32 v{T+2}, v{OK_+12}
v_mov_b32 v{T+3}, v{OK_+12}
s_mov_b32 exec_lo, 0
v_mov_b32 v{OK_+12}, 0
s_mov_b32 exec_lo, -1
v_permlane32_swap_b32 v{T+2}, v{T+3}
s_branch A_nj
A_nodd:
v_mov_b32 v{T+2}, v{OK_}
v_mov_b32 v{T+3}, v{OK_}
s_mov_b32 exec_hi, 0
v_mov_b32 v{OK_}, 0
s_mov_b32 exec_hi, -1
v_permlane32_swap_b32 v{T+3}, v{T+2}
A_nj:
s_mov_b32 s46, 0x30800000
s_mov_b32 s47, 0x4e800000
v_rcp_f32 v{T+2}, v{T+3}
v_cmp_nge_f32 vcc, v{T+3}, s46
v_cmp_nle_f32 s[66:67], v{T+3}, s47
s_or_b64 vcc, vcc, s[66:67]
s_cmp_lg_u32 s44, 0
s_cbranch_scc1 A_store
s_cbranch_vccnz L_slow
A_store:
""")
    for i in range(8):
        a(f"v_pk_mul_f32 {vr(OK_+2*i,2)}, {vr(OK_+2*i,2)}, {vr(T+2,2)} op_sel_hi:[1,0]")
    for i in range(8):
        a(f"v_cvt_pk_bf16_f32 v{OK_+i}, v{OK_+2*i}, v{OK_+2*i+1}")
    a("s_nop 0")
    for p in range(2):
        a(f"v_permlane32_swap_b32 v{OK_+4*p}, v{OK_+4*p+2}\nv_permlane32_swap_b32 v{OK_+4*p+1}, v{OK_+4*p+3}")
    for p in range(2):
        a(f"buffer_store_dwordx4 {vr(OK_+4*p,4)}, v1, s[12:15], s42 offen offset:{1024*p}")

def slow(a):
    T = TT
    a(f"""
L_slow:
s_waitcnt vmcnt(0)
s_add_u32 s45, s38, 56
s_lshl_b32 s45, s45, 9
s_mov_b32 m0, s40
""")
    for i in range(16):
        a(f"v_mov_b32 v{OK_+i}, 0\nv_mov_b32 v{NM+i}, 0")
    a(f"""
v_mov_b32 v{T+2}, 0xff800000
S_pass:
s_mov_b32 s43, 0
s_mov_b32 s16, s45
S_loop:
buffer_load_dwordx4 {vr(KF,4)}, v{KA}, s[12:15], s16 offen sc1
buffer_load_dwordx4 {vr(KF+4,4)}, v{KA+1}, s[12:15], s16 offen offset:1024 sc1
buffer_load_dwordx4 v{VS}, s[12:15], s16 offen sc1 lds
buffer_load_dwordx4 v{VS}, s[12:15], s16 offen offset:1024 sc1 lds
s_add_u32 s16, s16, {QKV_T}
s_waitcnt vmcnt(0)
""")
    rdV(a, 0, 0); rdV(a, 0, 1)
    qk(a, S[0], 0, 3, 0, vr(NM, 16)); qk(a, S[0], 0, 3, 1)
    a("s_nop 11\ns_waitcnt lgkmcnt(0)\ns_cmp_eq_u32 s44, 0\ns_cbranch_scc0 S_exp")
    for i in range(8):
        a(f"v_max3_f32 v{T+2}, v{T+2}, v{S[0]+2*i}, v{S[0]+2*i+1}")
    a("s_branch S_next\nS_exp:")
    for i in range(16):
        a(f"v_exp_f32 v{S[0]+i}, v{S[0]+i}")
    for i in range(8):
        a(f"v_cvt_pk_bf16_f32 v{P+i}, v{S[0]+2*i}, v{S[0]+2*i+1}")
    a("s_nop 1")
    pv(a, 3, 0); pv(a, 3, 1)
    a(f"""
S_next:
s_add_u32 s43, s43, 1
s_cmp_lt_u32 s43, 64
s_cbranch_scc1 S_loop
s_nop 12
s_cmp_eq_u32 s44, 1
s_cbranch_scc1 A_norm
s_mov_b32 s44, 1
v_mov_b32 v{T+3}, v{T+2}
s_nop 1
v_permlane32_swap_b32 v{T+2}, v{T+3}
s_nop 1
v_max_f32 v{T+2}, v{T+2}, v{T+3}
""")
    for i in range(16):
        a(f"v_sub_f32 v{NM+i}, 0, v{T+2}")
    a("s_branch S_pass")

def outproj(a):
    T = TT
    OF = 104
    WF = 24
    AC = [72, 88]
    WR, YR, G = 4, 5, 6
    a(f"""
s_and_b32 s44, s3, 1
s_lshr_b32 s45, s3, 1
s_bfe_u32 s34, s69, 0x30002
s_and_b32 s46, s69, 3
s_lshl2_add_u32 s46, s68, s46
s_lshl1_add_u32 s46, s46, s44
s_lshl1_add_u32 s47, s34, s45
; W tr base (8hf + i/4)*64 + ((l>>4)&1)*32 + (i%4)*8 + kh*224 rows ; y tr base
v_bfe_u32 v{T}, v0, 2, 2
v_lshl_add_u32 v{T}, v3, 2, v{T}
v_lshlrev_b32 v{T}, 6, v{T}
v_and_b32 v{T+1}, 16, v0
v_lshl_add_u32 v{T}, v{T+1}, 1, v{T}
v_and_b32 v{T+1}, 3, v0
v_lshl_add_u32 v{T}, v{T+1}, 3, v{T}
s_mul_i32 s41, s3, {YG_SLOT}
s_add_u32 s41, s41, {YG}
v_add_u32 v{YR}, s41, v{T}
s_lshl_b32 s43, s44, 7
s_add_u32 s41, s41, s43
v_lshl_add_u32 v{G}, v2, 2, s41
v_lshl_add_u32 v{T}, v3, 8, v{T}
s_mul_i32 s41, s45, {224*64 + 28672}
s_add_u32 s41, s41, {WO_B}
v_add_u32 v{WR+3}, s41, v{T}
s_mul_i32 s41, s45, {224*64 - 28672}
s_add_u32 s41, s41, {WO_B + 28672}
v_add_u32 v{WR}, s41, v{T}
v_lshlrev_b32 v{T}, 9, v0
s_lshr_b32 s41, s46, 2
s_lshl1_add_u32 s41, s41, s45
s_lshl_b32 s41, s41, 5
s_and_b32 s43, s46, 3
s_add_u32 s41, s41, s43
s_lshl_b32 s41, s41, 7
s_add_u32 s41, s41, {FO_OFF}
s_lshl1_add_u32 s42, s46, s45
s_lshl_b32 s42, s42, 14
s_add_u32 s42, s42, {O_OFF}
ds_read_b32 v{G}, v{G} offset:2048
""")
    YP, YV = 40, 48
    for q in range(4):
        a(f"ds_read_b64_tr_b16 {vr(YP+2*q,2)}, v{YR} offset:{512*q}")
    def rw(k):
        row = 56 * (k // 4) + (0, 16, 24, 40)[k % 4]
        F = WF + 8 * (k % 2)
        for c in range(2):
            for t in range(2):
                a(f"ds_read_b64_tr_b16 {vr(F+4*c+2*t,2)}, v{WR+3*c} offset:{row*64+t*256}")
    rw(0); rw(1)
    a(f"""
s_waitcnt vmcnt(0)
;STAMP 7
s_mov_b64 exec, 1
buffer_store_dwordx2 {vr(TK,2)}, v{Z}, s[12:15], s21 offen
s_mov_b64 exec, -1
s_cmp_eq_u32 s34, 7
s_cbranch_scc1 L_end
s_waitcnt lgkmcnt(8)
v_sub_f32 v{G+5}, 1.0, v{G}
""")
    for i in range(8):
        a(f"v_lshlrev_b32 v{YV+2*i}, 16, v{YP+i}\nv_and_b32 v{YV+1+2*i}, 0xffff0000, v{YP+i}")
    for i in range(16):
        a(f"v_mul_f32 v{YV+i}, v{YV+i}, v{G+5}")
    spin_global(a, "O_spo", T + 2, T, "s41", 0xff)
    a(";STAMP 8")
    for k in range(16):
        a(f"buffer_load_dwordx4 {vr(OF+4*k,4)}, v1, s[12:15], s42 offen offset:{1024*(k%4)} sc1")
        if k % 4 == 3 and k < 15: a("s_add_u32 s42, s42, 4096")
    a(f"""
v_add_u32 v{T}, s40, v1
s_xor_b32 s41, s3, 2
s_mul_i32 s41, s41, {VWAVE}
s_add_u32 s41, s41, {VR}
v_add_u32 v{T+1}, s41, v1
v_mul_u32_u24 v{T+2}, 896, v2
v_lshl_add_u32 v{T+2}, v3, 4, v{T+2}
s_mul_i32 s41, s46, {32*896}
s_lshl_b32 s42, s47, 6
s_add_u32 s41, s41, s42
""")
    if "t2" in VAR:
        a(f"""
s_add_u32 s42, s41, {16*896}
v_mul_u32_u24 v{T+3}, 80, v2
v_lshl_add_u32 v{T+3}, v3, 3, v{T+3}
v_add_u32 v{T+3}, s40, v{T+3}
v_lshrrev_b32 v{T+5}, 2, v0
v_and_b32 v{T+6}, 3, v0
v_lshlrev_b32 v{T+6}, 4, v{T+6}
v_mul_u32_u24 v{T+4}, 80, v{T+5}
v_add3_u32 v{T+4}, v{T+4}, v{T+6}, s40
v_mul_u32_u24 v{T+2}, 896, v{T+5}
v_add_u32 v{T+2}, v{T+2}, v{T+6}
""")
    for k in range(16):
        F = WF + 8 * (k % 2)
        a(f"s_waitcnt vmcnt({15-k}) lgkmcnt({4 if k < 15 else 0})")
        for c in range(2):
            cc = "0" if k == 0 else vr(AC[c], 16)
            a(f"v_mfma_f32_32x32x16_bf16 {vr(AC[c],16)}, {vr(F+4*c,4)}, {vr(OF+4*k,4)}, {cc}")
        if k + 2 < 16: rw(k + 2)
    a(";STAMP 9\ns_nop 10")
    for i in range(4):
        a(f"ds_write_b128 v{T}, {vr(AC[0]+4*i,4)} offset:{1024*i}")
    for i in range(16):
        a(f"v_fmac_f32 v{YV+i}, v{AC[1]+i}, v{G}")
    a("s_waitcnt lgkmcnt(0)\ns_barrier")
    for i in range(4):
        a(f"ds_read_b128 {vr(AC[0]+4*i,4)}, v{T+1} offset:{1024*i}")
    if "t2" in VAR:
        for p in range(2):
            a(f"s_waitcnt lgkmcnt({2 if p == 0 else 2})")
            for i in range(8*p, 8*p + 8):
                a(f"v_fmac_f32 v{YV+i}, v{AC[0]+i}, v{G}")
            for i in range(4*p, 4*p + 4):
                a(f"v_cvt_pk_bf16_f32 v{YP+i}, v{YV+2*i}, v{YV+1+2*i}")
            for q in range(2*p, 2*p + 2):
                a(f"ds_write_b64 v{T+3}, {vr(YP+2*q,2)} offset:{4096+16*q}")
        for p in range(2):
            a(f"ds_read_b128 {vr(YV+4*p,4)}, v{T+4} offset:{4096+16*80*p}")
        for p in range(2):
            a(f"s_waitcnt lgkmcnt({1-p})\nbuffer_store_dwordx4 {vr(YV+4*p,4)}, v{T+2}, s[56:59], s{41+p} offen")
    else:
        for p in range(2):
            a(f"s_waitcnt lgkmcnt({2-2*p})")
            for i in range(8*p, 8*p + 8):
                a(f"v_fmac_f32 v{YV+i}, v{AC[0]+i}, v{G}")
            for i in range(4*p, 4*p + 4):
                a(f"v_cvt_pk_bf16_f32 v{YP+i}, v{YV+2*i}, v{YV+1+2*i}")
            a("s_nop 1")
            a(f"v_permlane32_swap_b32 v{YP+4*p}, v{YP+4*p+2}\nv_permlane32_swap_b32 v{YP+4*p+1}, v{YP+4*p+3}")
            a(f"buffer_store_dwordx4 {vr(YP+4*p,4)}, v{T+2}, s[56:59], s41 offen offset:{32*p}")
    a("s_endpgm")

from fused_aux import aux, gate
```

```python
from asmlib import *
from layout import *
import fused as F
import os
DUMPK = os.environ.get("DUMPK")
VAR = os.environ.get("VAR", "")

def _rho():
    r = [[(j >> 1) + 8 * (j & 1) for j in range(16)]]
    partner = [13, 12, 15, 14, 9, 8, 11, 10]
    for e in range(3):
        n = [None] * 16
        for j in range(8):
            n[j] = r[e][2*j]; n[partner[j]] = n[j] ^ 8
        assert sorted(n) == list(range(16))
        r.append(n)
    return r
RHO = _rho()

def ticket(a):
    a(f"""
s_lshl_b32 s41, s68, 4
s_add_u32 s41, s41, 128
s_mov_b32 s33, 1
s_atomic_add s33, s[48:49], s41 glc
""")

def put_role(a, tmp, z):
    a(f"""
s_and_b32 s41, s33, 31
s_lshl_b32 s69, s68, 5
s_add_u32 s41, s41, s69
s_add_u32 s41, s41, 1
v_mov_b32 v{tmp}, s41
ds_write_b32 v{z}, v{tmp} offset:{F.MISC+8}
""")

def aux(a):
    SL = F.SL
    TK, Z = 8, 10
    RAW = 12
    DT = 16
    AA = 20
    RL = 24
    XF = 19
    MA = 25
    T = 26
    GA = list(range(239, 256))
    W = 34
    S0 = 38
    H = [42, 44]
    R = [46, 62]
    ACC = 78
    lo_r = lambda ps, i: (144 + i) if ps == 1 else (144 + i if i < 16 else 94 + i - 16)
    hi_r = lambda ps, i: (184 + i) if ps == 1 else (160 + i if i < 16 else 118 + i - 16)
    FAs = [46, 94]; FBs = [62, 118]; FE = 176
    FA, GAa, FA2 = 6, 7, 20
    NG = 17
    a(f"""
L_aux:
s_sub_u32 s3, s3, 4
s_lshr_b32 s36, s3, 1
s_and_b32 s37, s3, 1
s_lshr_b32 s39, s61, 5
s_lshr_b32 s38, s61, 6
s_add_u32 s38, s38, s36
s_lshl_b32 s40, s38, 9
s_lshl_b32 s41, s37, 8
s_add_u32 s40, s40, s41
v_lshl_add_u32 v{T}, v0, 2, s40
s_getpc_b64 s[66:67]
A_pc:
s_sub_u32 s66, s66, A_pc-{F.NAME}
s_subb_u32 s67, s67, 0
v_lshlrev_b32 v{T+1}, 7, v0
s_lshl_b32 s41, s3, 13
v_add_u32 v{T+1}, s41, v{T+1}
v_min_u32 v{T+1}, L_code_end-{F.NAME}-4, v{T+1}
global_load_dword v5, v{T+1}, s[66:67]
v_mov_b32 v{Z}, 0
v_mov_b32 v{MA}, {F.MISC}
v_lshl_add_u32 v{T+3}, v0, 2, v{MA}
ds_write_b32 v{T+3}, v{Z}
s_waitcnt lgkmcnt(0)
global_load_dword v{RAW}, v{T}, s[16:17]
global_load_dword v{RAW+1}, v{T}, s[18:19]
global_load_dword v{RAW+2}, v{T}, s[20:21]
global_load_dword v{RAW+3}, v{T}, s[22:23]
s_load_dword s44, s[24:25], s39
s_load_dword s45, s[26:27], s39
s_mov_b32 s47, 0
s_or_b32 s41, s2, s3
s_cmp_lg_u32 s41, 0
s_cbranch_scc1 X_notok
s_or_b32 s64, s64, 1
v_mov_b32 v{TK}, s64
v_mov_b32 v{TK+1}, s65
v_mov_b32 v{TK+3}, 0
s_mov_b64 exec, 1
global_atomic_cmpswap_x2 v{Z}, {vr(TK,4)}, s[48:49] sc1
s_mov_b64 exec, -1
s_mov_b32 s47, 1
X_notok:
""")
    a(f"""
s_barrier
s_mul_i32 s42, s36, {F.CH_AREA}
s_mul_i32 s43, s37, {F.KG_AREA}
s_add_u32 s43, s43, s42
s_add_u32 s43, s43, {F.CPY}
s_add_u32 s46, s42, {F.TAB}
s_lshl_b32 s41, s3, 2
v_add_u32 v{MA}, s41, v{MA}
""")
    for i in range(16):
        a(f"v_mov_b32 v{ACC+i}, 0")
    a(f"""
v_add_u32 v{T}, s42, v1
s_mov_b64 exec, 0x3fffffff
ds_write_b128 v{T}, {vr(ACC,4)} offset:{F.XP}
s_mul_i32 s50, s37, {F.TABK*256}
s_add_u32 s50, s50, s42
s_mov_b64 exec, -1
v_and_b32 v{T}, 15, v0
v_lshlrev_b32 v{T}, 2, v{T}
v_lshrrev_b32 v{T+3}, 4, v0
v_and_b32 v{T+1}, 16, v0
v_lshl_add_u32 v{T+1}, v{T+1}, 3, s43
v_lshl_add_u32 v{T+1}, v3, 6, v{T+1}
s_movk_i32 s41, {SL}
""")
    for e in range(4):
        c = sum(RHO[e][j] << (4*j) for j in range(16))
        a(f"""
s_mov_b32 s66, {hex(c & 0xffffffff)}
s_mov_b32 s67, {hex(c >> 32)}
v_lshrrev_b64 {vr(T+4,2)}, v{T}, s[66:67]
v_and_b32 v{T+4}, 15, v{T+4}
v_mad_u32_u24 v{AA+e}, v{T+4}, s41, v{T+1}
""")
    a(f"""
s_lshl_b32 s41, s37, 10
s_sub_u32 s41, 2047, s41
v_sub_u32 v{T}, s41, v1
v_cvt_f32_i32 v{T+1}, v{T}
""")
    def magic():
        a(f"""
v_ffbh_u32 v{T+4}, v{T}
v_sub_u32 v{T+4}, 24, v{T+4}
v_med3_i32 v{T+4}, v{T+4}, 0, 3
v_lshlrev_b32 v{T+5}, 23, v{T+4}
v_add_u32 v{T+5}, 0x4b400000, v{T+5}
v_lshlrev_b32 v{T+6}, 2, v{T+5}
v_lshlrev_b32 v{T+4}, 9, v{T+4}
v_sub_u32 v{T+4}, v{T+4}, v{T+6}
""")
    magic()
    for k in range(17):
        if k == 16:
            a(f"v_subrev_u32 v{T}, 16, v{T}\nv_max_i32 v{T}, 1, v{T}")
            magic()
        a(f"v_add_f32 v{GA[k]}, v{T+1}, v{T+5}")
        if k < 16: a(f"v_add_f32 v{T+1}, -1.0, v{T+1}")
        a(f"""
v_lshl_add_u32 v{GA[k]}, v{GA[k]}, 2, v{T+4}
v_ashrrev_i32 v{T+2}, 6, v{GA[k]}
v_lshl_add_u32 v{T+2}, v{T+2}, 4, s50
v_add_u32 v{GA[k]}, v{GA[k]}, v{T+2}
""")
    a(f"""
v_and_b32 v{T+4}, 15, v0
v_sub_u32 v{T}, 15, v{T+4}
v_and_b32 v{T+2}, 1, v{T}
v_mul_u32_u24 v{T+2}, 4158, v{T+2}
v_lshl_add_u32 v{T}, v{T}, 1, v{T+2}
s_lshl_b32 s41, s37, 8
s_add_u32 s41, s41, s42
v_lshl_add_u32 v{T+2}, v{T+3}, 4, s41
v_add_u32 v{FA}, v{T}, v{T+2}
v_lshl_add_u32 v{GAa}, v{T+4}, 5, v{T+2}
""")
    a(f"""
s_mov_b32 m0, s43
s_waitcnt lgkmcnt(0)
s_lshl_b32 s41, s36, 4
s_lshr_b32 s44, s44, s41
s_lshl_b32 s44, s44, 16
s_lshr_b32 s45, s45, s41
s_lshl_b32 s45, s45, 16
v_mov_b32 v{DT+2}, {hex(f2u(LOG2E))}
v_mul_f32 v{DT}, s44, v{DT+2}
v_exp_f32 v{DT}, v{DT}
s_mov_b64 exec, 1
v_mul_f32 v{ACC}, s45, 0.5
s_mov_b64 exec, -1
v_cvt_pk_bf16_f32 v{DT}, v{DT}, v{DT}
v_lshlrev_b32 v{DT}, 16, v{DT}
v_add_f32 v{DT+1}, v{DT}, v{DT}
v_lshlrev_b32 v{XF}, 7, v2
s_lshl_b32 s51, s68, 15
s_add_u32 s51, s51, {FQ_OFF + 224*128}
s_waitcnt vmcnt(1)
s_cmp_lg_u32 s47, 0
s_cbranch_scc1 X_go
s_waitcnt vmcnt(0)
X_go:
;STAMP 0
""")
    PKM = [False]
    def cmul(d, x, w):
        if PKM[0]:
            return [f"v_pk_mul_f32 {vr(d,2)}, {vr(x,2)}, {vr(w,2)} op_sel_hi:[1,0]",
                    f"v_pk_fma_f32 {vr(d,2)}, {vr(x,2)}, {vr(w,2)}, {vr(d,2)} op_sel:[1,1,0] op_sel_hi:[0,1,1] neg_lo:[1,0,0]"]
        return [f"v_mul_f32 v{d}, v{x}, v{w}", f"v_mul_f32 v{d+1}, v{x+1}, v{w}",
                f"v_fmac_f32 v{d}, v{x+1}, v{w+2}", f"v_fmac_f32 v{d+1}, v{x}, v{w+1}"]
    def csq(d, x, t):
        if PKM[0]:
            t2 = (T, T + 4, T + 6)[t - T]
            return [f"v_pk_mul_f32 {vr(t2,2)}, {vr(x,2)}, {vr(x,2)} op_sel_hi:[1,0]",
                    f"v_pk_fma_f32 {vr(d,2)}, {vr(x,2)}, {vr(x,2)}, {vr(t2,2)} op_sel:[1,1,0] op_sel_hi:[0,1,1] neg_lo:[1,0,0]"]
        return [f"v_mul_f32 v{t}, v{x+1}, v{x+1}", f"v_mul_f32_e64 v{d+1}, v{x}, v{x+1} mul:2", f"v_fma_f32 v{d}, v{x}, v{x}, -v{t}"]
    def merge(x, y):
        out = []; i = j = 0
        while i < len(x) or j < len(y):
            if j >= len(y) or (i < len(x) and i * len(y) <= j * len(x)): out.append(x[i]); i += 1
            else: out.append(y[j]); j += 1
        return out
    R0, R1 = R
    L = lambda k: R0 + 2*k
    U = lambda k: R1 + 2*k
    rdA = lambda e, fa: [f"ds_read_b128 {vr(fa+4*q,4)}, v{AA+e} offset:{16*q}" for q in range(4)]
    rdB = lambda fb: [f"ds_read_b128 {vr(fb+4*q,4)}, v{AA} offset:{16*SL+16*q}" for q in range(4)]
    mfmas = lambda e, fa, fb: [f"v_mfma_f32_16x16x32_bf16 {vr(ACC+4*e,4)}, {vr(fa+4*q,4)}, {vr(fb+4*q,4)}, {vr(ACC+4*e,4)}" for q in range(4)]
    wlo = lambda ps, b, k0=0: [f"ds_write_addtid_b32 v{lo_r(ps,8*b+k)} offset:{RHO[max(b-1,0)][(8 if b else 0)+k]*SL}" for k in range(k0, 8)]
    whi = lambda ps, b, n=8: [f"ds_write_addtid_b32 v{hi_r(ps,8*b+k)} offset:{(16+RHO[0][8*(b%2)+k])*SL}" for k in range(n)]
    def spread(body, ms, at):
        out = list(body)
        for i, m in reversed(list(enumerate(ms))): out.insert(at + 4*i, m)
        out.insert(at, "s_waitcnt lgkmcnt(0)")
        return out
    stream = []
    for ps in range(2):
        PKM[0] = ps == 0 and "pk" in VAR
        if ps == 1: pass1_start = len(stream)
        ex = (lambda d, r: f"v_lshlrev_b32 v{d}, 16, v{r}") if ps == 0 else (lambda d, r: f"v_and_b32 v{d}, 0xffff0000, v{r}")
        stream += f"""
{ex(T, RAW)}
{ex(T+1, RAW+1)}
v_mul_f32 v{T}, v{T}, v{DT+2}
v_exp_f32 v{T}, v{T}
v_mul_f32 v{T+1}, v{T+1}, v{DT}
v_mul_f32 v{T+1}, 0.15915494, v{T+1}
v_cvt_pk_bf16_f32 v{T}, v{T}, v{T}
v_rndne_f32 v{T+2}, v{T+1}
v_lshlrev_b32 v{T}, 16, v{T}
v_sub_f32 v{T+1}, v{T+1}, v{T+2}
v_mul_f32 v{T}, v{T}, v{DT}
v_mul_f32 v{T}, v{T}, -v{DT+2}
v_cos_f32 v{W}, v{T+1}
v_sin_f32 v{W+1}, v{T+1}
v_exp_f32 v{T+2}, v{T}
v_mul_f32 v{T+1}, 0x41800000, v{T+1}
v_mul_f32 v{T}, 0x41800000, v{T}
v_mul_f32 v{W}, v{W}, v{T+2}
v_mul_f32 v{W+1}, v{W+1}, v{T+2}
v_cos_f32 v{S0}, v{T+1}
v_sin_f32 v{S0+2}, v{T+1}
v_exp_f32 v{T+2}, v{T}
v_sub_f32 v{W+2}, 0, v{W+1}
{ex(H[0], RAW+2)}
{ex(H[0]+1, RAW+3)}
v_mul_f32 v{S0}, v{S0}, v{T+2}
v_mul_f32 v{S0+2}, v{S0+2}, v{T+2}
v_mul_f32 v{H[0]}, v{H[0]}, v{DT+1}
v_mul_f32 v{H[0]+1}, v{H[0]+1}, -v{DT+1}
v_sub_f32 v{S0+1}, 0, v{S0+2}
""".strip().split("\n")
        lo_init = csq(L(2), W, T) + cmul(L(3), L(2), W) + csq(L(4), L(2), T) + cmul(L(5), L(4), W) + csq(L(6), L(3), T) + cmul(L(7), L(6), W)
        lo_b1 = []
        for k in range(4): lo_b1 += csq(U(2*k), L(4+k), T) + cmul(U(2*k+1), U(2*k), W)
        lo_sq = []
        for k in range(8): lo_sq += csq(U(k), U(k), T + (k % 2))
        hs = 0
        for b in range(5):
            if b >= 2: stream += csq(S0, S0, T + 2) + ([] if PKM[0] else [f"v_sub_f32 v{S0+2}, 0, v{S0+1}"])
            if b == 0:
                cv = ([f"v_mov_b32 v{lo_r(0,0)}, 0x3f80"] if ps == 0 else []) + [f"v_cvt_pk_bf16_f32 v{lo_r(ps,1)}, v{W}, v{W+1}"] + [f"v_cvt_pk_bf16_f32 v{lo_r(ps,k)}, v{L(k)}, v{L(k)+1}" for k in range(2, 8)]
            else:
                cv = [f"v_cvt_pk_bf16_f32 v{lo_r(ps,8*b+k)}, v{U(k)}, v{U(k)+1}" for k in range(8)]
            hi = []
            for k in range(9 if b == 4 else 8):
                hi.append(f"v_cvt_pk_bf16_f32 v{hi_r(ps,8*b+k)}, v{H[hs]}, v{H[hs]+1}")
                if k < 8:
                    hi += cmul(H[1-hs], H[hs], S0); hs ^= 1
            blk_ = merge((lo_init, lo_b1, lo_sq, lo_sq, lo_sq)[b] + cv, hi)
            if ps == 0:
                if b == 2:
                    blk_ = spread(blk_, mfmas(0, FE, FE + 16), len(blk_) - 18)
                    first_bar = len(stream) + len(blk_)
                if b < 2: blk_ += wlo(0, b) + whi(0, b)
                if b == 1: blk_ += rdA(0, FE) + rdB(FE + 16)
            stream += blk_
    B0 = pass1_start + int(os.environ.get("B0", "-45")); BD = int(os.environ.get("BD", "70"))
    assert B0 >= first_bar
    bars = [min(B0 + BD*i, len(stream)) for i in range(7)]
    nb = 0
    for i in range(len(stream) + 1):
        for _ in range(bars.count(i)):
            a("s_barrier")
            if nb == 0:
                a(";STAMP 9\ns_cmp_lg_u32 s3, 1\ns_cbranch_scc1 X_notick")
                ticket(a)
                a("X_notick:")
            if nb == 3: a(f"global_load_dwordx2 {vr(TK,2)}, v{Z}, s[48:49] sc1")
            nb += 1
        if i < len(stream): a(stream[i])
    a(";STAMP 6\ns_setprio 1\ns_waitcnt vmcnt(0) lgkmcnt(0)\ns_cmp_lg_u32 s3, 1\ns_cbranch_scc1 X_norole")
    put_role(a, RL, Z)
    a("X_norole:")
    F.token_finish(a, "X_tok", TK, Z)
    def xp_dma():
        a("s_cmp_lg_u32 s3, 0\ns_cbranch_scc1 X_noxp")
        a("s_waitcnt vmcnt(0)\nv_cmp_ne_u64 vcc, v[4:5], s[62:63]\ns_cmp_eq_u32 vcc_lo, 0\ns_cbranch_scc1 X_xok")
        F.spin_global(a, "X_spx", 4, XF, "s51", 0xffffffff)
        a(f"""
X_xok:
s_lshl_b32 s44, s38, 12
s_mov_b32 m0, {F.XP + 480}
s_add_u32 s44, s44, {XT_OFF}
""")
        for c in range(2):
            for i in range(4):
                a(f"buffer_load_dwordx4 v1, s[12:15], s44 offen offset:{1024*i} sc1 lds")
            if c == 0: a(f"s_mov_b32 m0, {F.CH_AREA + F.XP + 480}\ns_add_u32 s44, s44, 4096")
        a("s_mov_b32 m0, s43\nX_noxp:\ns_lshl_b32 s45, s37, 11\ns_add_u32 s45, s45, s42")
    a(f"""
{"" if "nob8" in VAR else "s_barrier"}
s_cmp_lg_u32 s3, 0
s_cbranch_scc1 X_nop
s_mov_b32 exec_hi, 0
buffer_load_dwordx2 v[4:5], v{XF}, s[12:15], s51 offen sc1
s_mov_b32 exec_hi, -1
X_nop:
""")
    a(";STAMP 7")
    W15 = ["s_waitcnt lgkmcnt(15)"]
    A0_, A1_, B0_, B1_ = FAs[0], FAs[1], FBs[0], FBs[1]
    for x in (wlo(0, 2) + whi(0, 2) + whi(0, 3) + rdA(1, A0_) + rdB(B0_) + wlo(0, 3) + rdA(2, A1_) + wlo(0, 4) + W15 + mfmas(1, A0_, B0_) +
              whi(0, 4, 9) + W15 + mfmas(2, A1_, B0_) + rdA(3, A0_) + rdB(B1_) + wlo(1, 0, 1) + wlo(1, 1) + W15 + mfmas(3, A0_, B1_) +
              whi(1, 0) + whi(1, 1) + rdA(0, A1_) + rdB(B0_)): a(x)
    xp_dma()
    for x in (wlo(1, 2) + whi(1, 2) + whi(1, 3) + W15 + mfmas(0, A1_, B0_) + rdA(1, A0_) + rdB(B1_) + wlo(1, 3) + rdA(2, A1_) + wlo(1, 4) + W15 +
              mfmas(1, A0_, B1_) + whi(1, 4, 9) + W15 + mfmas(2, A1_, B1_) + rdA(3, A0_) + rdB(B0_) + ["s_waitcnt lgkmcnt(0)"] + mfmas(3, A0_, B0_)): a(x)
    a(";STAMP 1")
    a(f"""
v_and_b32 v{T}, 15, v0
v_mul_u32_u24 v{T}, 80, v{T}
v_lshl_add_u32 v{T}, v{T+3}, 4, v{T}
v_add_u32 v{T}, s50, v{T}
s_mov_b32 exec_lo, 0xff00ff00
s_mov_b32 exec_hi, 0xff00ff00
v_mov_b32 v{ACC+4}, v{ACC+8}
v_mov_b32 v{ACC+5}, v{ACC+9}
v_mov_b32 v{ACC+6}, v{ACC+10}
v_mov_b32 v{ACC+7}, v{ACC+11}
s_mov_b64 exec, -1
v_mov_b32 v{T+1}, 1
ds_write_b128 v{T}, {vr(ACC,4)} offset:{F.TAB}
ds_write_b128 v{T}, {vr(ACC+4,4)} offset:{F.TAB+1280}
s_mov_b32 exec_lo, 0x01ff01ff
s_mov_b32 exec_hi, 0x01ff01ff
ds_write_b128 v{T}, {vr(ACC+12,4)} offset:{F.TAB+2560}
s_mov_b64 exec, -1
ds_write_b32 v{MA}, v{T+1} offset:16
v_xor_b32 v{MA}, 4, v{MA}
s_mul_i32 s41, s37, {-2*F.TABK*256}
s_add_u32 s41, s41, {F.TABK*256}
v_add_u32 v{T+4}, s41, v{T}
""")
    F.spin_lds(a, "X_a1", MA, 16, 1, T + 2)
    a(";STAMP 2")
    V = 96
    CP = 136
    A0, A1 = 46, 62
    for i, o in enumerate((0, 1280, 2560)):
        a(f"ds_read_b128 {vr(V+4*i,4)}, v{T+4} offset:{F.TAB+o}")
    for i in range(4):
        a(f"v_mov_b32 v{A0+i}, 0")
    a(f"""
v_lshrrev_b32 v{T+2}, 2, v0
v_mul_u32_u24 v{T+2}, {4160-64}, v{T+2}
v_add3_u32 v{T+2}, v{T+2}, v1, s42
s_mov_b64 exec, 0xff
ds_write_b128 v{T+2}, {vr(A0,4)} offset:{F.CPY+4096}
s_mov_b64 exec, -1
s_waitcnt lgkmcnt(1)
""")
    for i, r in enumerate((ACC, ACC + 4, ACC + 12)):
        for k in range(4): a(f"v_add_f32 v{r+k}, v{r+k}, v{V+4*i+k}")
    a(f"""
ds_write_b128 v{T}, {vr(ACC,4)} offset:{F.SUM}
ds_write_b128 v{T}, {vr(ACC+4,4)} offset:{F.SUM+1280}
s_mov_b32 exec_lo, 0x01ff01ff
s_mov_b32 exec_hi, 0x01ff01ff
ds_write_b128 v{T}, {vr(ACC+12,4)} offset:{F.SUM+2560}
s_mov_b64 exec, 3
v_add_u32 v{T+2}, s50, v1
ds_write_b128 v{T+2}, {vr(A0,4)} offset:{F.SUM-32}
s_mov_b64 exec, -1
""")
    for k in range(NG):
        a(f"ds_read_b32 v{V+k}, v{GA[k]} offset:{F.SUM}")
    a(f"""
v_lshl_add_u32 v{T}, v0, 5, s45
v_add_u32 v{FA2}, 1024, v{FA}
v_add_u32 v{FA2+1}, 2048, v{FA}
v_add_u32 v{FA2+2}, 3072, v{FA}
s_waitcnt lgkmcnt(0)
;STAMP 10
""")
    for q in range(2):
        for i in range(8):
            a(f"v_cvt_pk_bf16_f32 v{CP+8*q+i}, v{V+q+2*i}, v{V+q+2*i+1}")
        for i in range(2):
            a(f"ds_write_b128 v{T}, {vr(CP+8*q+4*i,4)} offset:{F.CPY+4160*q+16*i}")
    if DUMPK:
        a(f"""
v_lshlrev_b32 v{T+2}, 5, v0
s_lshl_b32 s44, s38, 12
s_lshl_b32 s45, s37, 11
s_add_u32 s44, s44, s45
s_add_u32 s44, s44, {KD_OFF}
s_cmp_ge_u32 s38, 256
s_cselect_b32 s44, 0x70000000, s44
buffer_store_dwordx4 {vr(CP,4)}, v{T+2}, s[12:15], s44 offen
buffer_store_dwordx4 {vr(CP+4,4)}, v{T+2}, s[12:15], s44 offen offset:16
""")
    a(f"""
v_xor_b32 v{T}, 4, v{MA}
s_waitcnt vmcnt(0) lgkmcnt(0)
;STAMP 11
ds_write_b32 v{T}, v{T+1} offset:32
""")
    F.spin_lds(a, "X_a2", MA, 32, 1, T + 2)
    F.spin_lds(a, "X_a20", Z, F.MISC + 32, 1, T + 2)
    a(";STAMP 3")
    CF = [96, 160]
    def crd(B, off):
        out = []
        for m in range(8):
            fr = ([FA] + [FA2 + i for i in range(3)])[(7 - m) // 2]
            o = (F.CPY + off + 512 * ((7 - m) % 2)) // 4
            out += [f"ds_read_b128 {vr(B+32+4*m,4)}, v{GAa} offset:{F.XP+off+512*m}",
                    f"ds_read2_b32 {vr(B+4*m,2)}, v{fr} offset0:{o} offset1:{o+1}",
                    f"ds_read2_b32 {vr(B+4*m+2,2)}, v{fr} offset0:{o+2} offset1:{o+3}"]
        return out
    first = crd(CF[0], 0)
    for x in first[:15]: a(x)
    pairs = sorted(((m, g) for m in range(8) for g in range(8) if m + g <= 7), key=lambda p: (max(p), p))
    for st in range(4):
        B = CF[st % 2]
        nxt = crd(CF[1 - st % 2], 64*(st+1)) if st < 3 else []
        if st == 0: nxt = first[15:] + nxt
        else: a("s_waitcnt lgkmcnt(0)")
        issued = 15; lvl = -1
        for n, (m, g) in enumerate(pairs):
            if st == 0 and max(m, g) > lvl:
                lvl = max(m, g)
                a(f"s_waitcnt lgkmcnt({min(15, issued - 3*(lvl+1))})")
            c = "0" if st == 0 and (m, g) == min((p for p in pairs if sum(p) == m + g), key=pairs.index) else vr(A0+4*(m+g), 4)
            a(f"v_mfma_f32_16x16x32_bf16 {vr(A0+4*(m+g),4)}, {vr(B+4*m,4)}, {vr(B+32+4*g,4)}, {c}")
            if n < len(nxt):
                a(nxt[n]); issued += 1
    a(f"""
;STAMP 4
s_setprio 0
s_barrier
s_add_u32 s42, s42, {F.TB0}
s_lshl_b32 s41, s37, 12
s_add_u32 s44, s41, s42
v_add_u32 v{T+4}, s44, v1
s_xor_b32 s41, s41, 4096
s_add_u32 s44, s41, s42
v_add_u32 v{T+3}, s44, v1
s_cmp_eq_u32 s37, 0
s_cbranch_scc1 X_noswap
""")
    for i in range(16):
        a(f"v_swap_b32 v{A0+i}, v{A1+i}")
    a("X_noswap:")
    for i in range(4):
        a(f"ds_write_b128 v{T+4}, {vr(A1+4*i,4)} offset:{1024*i}")
    a(f"ds_write_b32 v{T}, v{T+1} offset:64")
    F.spin_lds(a, "X_a4", MA, 64, 1, T + 2)
    for i in range(4):
        a(f"ds_read_b128 {vr(A1+4*i,4)}, v{T+3} offset:{1024*i}")
    a(f"""
v_and_b32 v{T}, 15, v0
v_lshl_add_u32 v{T}, v{T}, 5, s44
v_lshrrev_b32 v{T+4}, 4, v0
v_lshl_add_u32 v{T}, v{T+4}, 3, v{T}
s_lshl_b32 s41, s38, 12
s_lshl_b32 s44, s37, 11
s_add_u32 s41, s41, s44
s_add_u32 s41, s41, {YT_OFF}
s_waitcnt lgkmcnt(0)
""")
    for i in range(16):
        a(f"v_add_f32 v{A0+i}, v{A0+i}, v{A1+i}")
    for i in range(8):
        a(f"v_cvt_pk_bf16_f32 v{A0+i}, v{A0+2*i}, v{A0+2*i+1}")
    for p in range(4):
        a(f"ds_write_b64 v{T}, {vr(A0+2*p,2)} offset:{512*p}")
    for p in range(2):
        a(f"ds_read_b128 {vr(A1+4*p,4)}, v{T+3} offset:{1024*p}")
    a("s_waitcnt lgkmcnt(0)\n;STAMP 8")
    for p in range(2):
        a(f"buffer_store_dwordx4 {vr(A1+4*p,4)}, v1, s[12:15], s41 offen offset:{1024*p} sc1")
    a(f"""
s_waitcnt vmcnt(0)
;STAMP 5
s_mov_b64 exec, 1
ds_add_rtn_u32 v{T+1}, v{Z}, v{T+1} offset:{F.MISC+4}
s_mov_b64 exec, -1
s_add_u32 s41, s61, {FY_OFF}
s_waitcnt lgkmcnt(0)
v_readfirstlane_b32 s44, v{T+1}
s_cmp_lg_u32 s44, 3
s_cbranch_scc1 X_nopub
""")
    F.publish8(a, TK, T + 1, "s41")
    a("X_nopub:")
    F.spin_lds(a, "X_y4", Z, F.MISC + 4, 4, T + 2)
    a("X_tail_wo:")
    F.get_role(a, "X_role", Z, T + 2)
    a(f"""
s_bfe_u32 s39, s69, 0x30002
s_cmp_eq_u32 s39, 7
s_cbranch_scc1 L_end
v_lshrrev_b32 v{T+2}, 2, v0
v_and_b32 v{T+3}, 3, v0
v_mul_u32_u24 v{T+2}, 896, v{T+2}
v_lshl_add_u32 v{T+2}, v{T+3}, 4, v{T+2}
s_mul_i32 s41, s3, {112*896}
s_lshl_b32 s44, s39, 7
s_add_u32 s41, s41, s44
s_mul_i32 s44, s3, 7168
s_add_u32 s44, s44, {F.WO_B}
s_add_u32 s45, s44, 7168
X_wo:
s_mov_b32 m0, s44
s_nop 0
buffer_load_dwordx4 v{T+2}, s[52:55], s41 offen lds
s_add_u32 m0, s44, {28672-64}
s_add_u32 s44, s44, 1024
buffer_load_dwordx4 v{T+2}, s[52:55], s41 offen offset:64 lds
s_add_u32 s41, s41, {16*896}
s_waitcnt vmcnt(4)
s_cmp_lt_u32 s44, s45
s_cbranch_scc1 X_wo
""")
    a(f"""
s_lshr_b32 s36, s3, 1
s_lshl1_add_u32 s36, s39, s36
s_and_b32 s44, s69, 3
s_lshl2_add_u32 s44, s68, s44
s_lshl_b32 s41, s36, 11
v_lshl_add_u32 v{T}, v0, 7, s41
s_lshl_b32 s41, s44, 7
s_add_u32 s41, s41, {224*128}
s_mov_b64 exec, 0x10000
v_mov_b32 v{T}, s41
s_lshl_b32 s41, s68, 15
s_add_u32 s41, s41, {FY_OFF}
""")
    F.spin_global(a, "X_spy", T + 2, T, "s41", 0x1ffff)
    a(f"""
v_lshrrev_b32 v{T}, 2, v0
v_and_b32 v{T+1}, 3, v0
v_lshlrev_b32 v{T+1}, 4, v{T+1}
v_lshl_add_u32 v{T}, v{T}, 12, v{T+1}
s_and_b32 s45, s3, 1
s_lshl1_add_u32 s45, s44, s45
s_lshl_b32 s45, s45, 6
s_lshl_b32 s41, s36, 17
s_add_u32 s41, s41, s45
s_add_u32 s41, s41, {YT_OFF}
s_mul_i32 s45, s3, {F.YG_SLOT}
s_add_u32 m0, s45, {F.YG}
s_add_u32 s45, s41, {65536-1024}
buffer_load_dwordx4 v{T}, s[12:15], s41 offen sc1 lds
buffer_load_dwordx4 v{T}, s[12:15], s45 offen offset:1024 sc1 lds
v_lshlrev_b32 v{T}, 2, v0
s_lshl_b32 s41, s44, 8
s_add_u32 s41, s41, {G_OFF-2048}
buffer_load_dword v{T}, s[12:15], s41 offen offset:2048 sc1 lds
""")
    if "t1" in VAR:
        a(f"""
s_getpc_b64 s[66:67]
X_pc2:
s_sub_u32 s66, s66, X_pc2-L_tail
s_subb_u32 s67, s67, 0
v_lshlrev_b32 v{T}, 7, v2
s_mov_b32 exec_hi, 0
global_load_dword v5, v{T}, s[66:67]
""")
    a(f"""
s_waitcnt vmcnt(0)
s_endpgm
""")

def gate(a):
    TK, Z = 8, 10
    T = 12
    X, W = 24, 52
    XT = 80
    RD = 16
    a(f"""
L_gate:
s_lshl_b32 s36, s35, 6
v_lshrrev_b32 v{T}, 3, v0
v_add_u32 v{T}, s36, v{T}
v_mul_u32_u24 v4, 896, v{T}
v_lshrrev_b32 v{T+1}, 4, v0
v_xor_b32 v{T+2}, v{T+1}, v0
v_and_b32 v{T+2}, 7, v{T+2}
v_lshl_add_u32 v5, v{T+2}, 4, v4
v_xor_b32 v{T+2}, 4, v{T+2}
v_lshl_add_u32 v6, v{T+2}, 4, v4
v_add_u32 v6, {8*896-1024}, v6
s_lshl_b32 s37, s3, 14
s_mov_b32 m0, s37
s_lshl_b32 s38, s3, 7
v_mov_b32 v{Z+1}, {F.MISC}
v_mov_b32 v{Z}, 0
v_mov_b32 v{Z-1}, 4
ds_write2_b32 v{Z+1}, v{Z-1}, v{Z} offset0:1 offset1:2
s_waitcnt lgkmcnt(0)
s_cmp_eq_u32 s3, 7
s_cbranch_scc1 T_w7
""")
    for i in range(4):
        a(f"""
buffer_load_dwordx4 v5, s[4:7], s38 offen lds
buffer_load_dwordx4 v6, s[4:7], s38 offen offset:1024 lds
""")
        if i < 3: a(f"s_add_u32 m0, m0, 2048\ns_add_u32 s38, s38, {16*896}")
    a(f"""
v_bfe_u32 v{T+2}, v0, 2, 2
v_lshl_add_u32 v{T+2}, v{T+1}, 4, v{T+2}
v_lshl_add_u32 v{T+2}, v{T+2}, 7, s37
v_lshrrev_b32 v{T+3}, 2, v0
v_xor_b32 v{T+3}, v{T+3}, v0
v_and_b32 v{T+3}, 2, v{T+3}
v_lshl_add_u32 v{T+2}, v{T+3}, 3, v{T+2}
v_and_b32 v{T+3}, 1, v0
v_lshl_add_u32 v{RD}, v{T+3}, 3, v{T+2}
v_xor_b32 v{RD+1}, 32, v{RD}
v_xor_b32 v{RD+2}, 64, v{RD}
v_xor_b32 v{RD+3}, 96, v{RD}
v_and_b32 v{T+2}, 15, v0
v_mul_u32_u24 v{T+2}, 144, v{T+2}
v_lshl_add_u32 v{T+2}, v{T+1}, 5, v{T+2}
v_add_u32 v20, s37, v{T+2}
v_lshrrev_b32 v{T+2}, 3, v0
v_and_b32 v{T+3}, 7, v0
v_lshlrev_b32 v{T+3}, 4, v{T+3}
v_lshl_add_u32 v22, v{T+2}, 12, v{T+3}
v_mul_u32_u24 v{T+2}, 144, v{T+2}
v_add3_u32 v21, v{T+2}, v{T+3}, s37
s_lshl_b32 s38, s3, 18
s_lshl_b32 s39, s35, 7
s_add_u32 s38, s38, s39
s_add_u32 s38, s38, {XT_OFF}
s_waitcnt vmcnt(0)
;STAMP 1
""")
    for c in range(4):
        for t in range(4):
            a(f"ds_read_b64_tr_b16 {vr(XT+8*c+2*t,2)}, v{RD+(t^c)} offset:{512*t}")
    a("s_waitcnt lgkmcnt(0)")
    for c in range(4):
        for i in range(2):
            a(f"ds_write_b128 v20, {vr(XT+8*c+4*i,4)} offset:{16*144*c+16*i}")
    for i in range(8):
        a(f"ds_read_b128 {vr(XT+4*i,4)}, v21 offset:{8*144*i}")
    for i in range(8):
        a(f"s_waitcnt lgkmcnt({7-i})")
        a(f"buffer_store_dwordx4 {vr(XT+4*i,4)}, v22, s[12:15], s38 offen sc1")
        if i < 7: a("s_add_u32 s38, s38, 32768")
    a("s_branch T_st\nT_w7:")
    ticket(a)
    a(f"T_st:\nglobal_load_dwordx2 {vr(TK,2)}, v{Z}, s[48:49] sc1\ns_waitcnt vmcnt(0)")
    F.token_finish(a, "T_tok", TK, Z)
    a(f"""
;STAMP 0
s_add_u32 s39, s61, {FQ_OFF}
s_barrier
s_cmp_lg_u32 s3, 0
s_cbranch_scc1 T_np
""")
    F.publish8(a, TK, T + 2, "s39")
    a("T_np:\ns_barrier\ns_cmp_lg_u32 s3, 7\ns_cbranch_scc1 T_g\ns_waitcnt lgkmcnt(0)")
    put_role(a, T + 2, Z)
    a(f"""
T_g:
v_and_b32 v{T+2}, 7, v0
v_lshlrev_b32 v{T+2}, 4, v{T+2}
s_mul_i32 s38, s3, {8*896}
v_add3_u32 v{T+3}, v4, v{T+2}, s38
""")
    for i in range(7):
        a(f"global_load_dwordx4 {vr(X+4*i,4)}, v{T+3}, s[4:5] offset:{128*i}")
        a(f"global_load_dwordx4 {vr(W+4*i,4)}, v{T+2}, s[28:29] offset:{128*i}")
    a("v_mov_b32 v23, 0\ns_waitcnt vmcnt(0)")
    for i in range(28):
        a(f"v_dot2c_f32_bf16 v23, v{X+i}, v{W+i}")
    a(f"""
s_nop 2
v_add_f32_dpp v23, v23, v23 quad_perm:[1,0,3,2] row_mask:0xf bank_mask:0xf
s_nop 1
v_add_f32_dpp v23, v23, v23 quad_perm:[2,3,0,1] row_mask:0xf bank_mask:0xf
s_nop 1
v_add_f32_dpp v23, v23, v23 row_half_mirror row_mask:0xf bank_mask:0xf
v_mul_f32 v23, {hex(f2u(-LOG2E))}, v23
v_exp_f32 v23, v23
v_lshlrev_b32 v{T}, 2, v{T}
v_add_f32 v23, 1.0, v23
v_rcp_f32 v23, v23
s_lshl_b32 s36, s3, 5
s_add_u32 s36, s36, {G_OFF}
s_mov_b32 exec_lo, 0x01010101
s_mov_b32 exec_hi, 0x01010101
buffer_store_dword v23, v{T}, s[12:15], s36 offen sc1
s_mov_b64 exec, -1
s_waitcnt vmcnt(0)
s_barrier
s_cmp_lt_u32 s3, 4
s_cbranch_scc1 L_attn
s_sub_u32 s3, s3, 4
s_cmp_lg_u32 s3, 0
s_cbranch_scc1 T_w
s_add_u32 s41, s61, {FY_OFF}
""")
    F.publish8(a, TK, T, "s41")
    a("T_w:\ns_barrier\ns_branch X_tail_wo")
```

```python
T = """; @launch grid=({grid},1,1) block=({block},1,1) lds=131072
.amdgcn_target "amdgcn-amd-amdhsa--gfx950"
.text
.globl mb_kernel
.p2align 8
.type mb_kernel,@function
mb_kernel:
    s_load_dwordx2 s[4:5], s[0:1], 104
    s_load_dwordx2 s[6:7], s[0:1], 0
    s_waitcnt lgkmcnt(0)
    s_mov_b32 s8, s4
    s_mov_b32 s9, s5
    s_mov_b32 s10, 0x100000
    s_mov_b32 s11, 0x00020000
    s_mov_b32 s12, s6
    s_mov_b32 s13, s7
    s_mov_b32 s14, 0x400000
    s_mov_b32 s15, 0x00020000
    s_and_b32 s16, s2, 15
    s_mul_i32 s16, s16, 128*896
    v_and_b32 v10, 63, v0
    v_lshrrev_b32 v11, 6, v0       ; wave
    s_nop 0
    v_readfirstlane_b32 s17, v11
{addr}
    s_barrier
    s_memtime s[20:21]
    s_waitcnt lgkmcnt(0)
{body}
    s_waitcnt vmcnt(0)
    s_memtime s[22:23]
    s_waitcnt lgkmcnt(0)
    s_sub_u32 s22, s22, s20
    v_mov_b32 v1, s22
    v_lshrrev_b32 v2, 6, v0
    v_lshlrev_b32 v2, 2, v2
    s_lshl_b32 s3, s2, 5
    v_add_u32 v2, s3, v2
    buffer_store_dword v1, v2, s[8:11], 0 offen
    s_waitcnt vmcnt(0)
    s_endpgm
.section .rodata,"a"
.p2align 6
.amdhsa_kernel mb_kernel
  .amdhsa_next_free_vgpr 256
  .amdhsa_next_free_sgpr 102
  .amdhsa_accum_offset 256
  .amdhsa_group_segment_fixed_size 0
  .amdhsa_kernarg_size 112
  .amdhsa_user_sgpr_count 2
  .amdhsa_user_sgpr_kernarg_segment_ptr 1
  .amdhsa_system_sgpr_workgroup_id_x 1
.end_amdhsa_kernel
"""
addrA = """    v_and_b32 v12, 31, v10
    v_lshl_add_u32 v12, v11, 5, v12
    v_mul_u32_u24 v12, 896, v12
    v_lshrrev_b32 v13, 5, v10
    v_lshl_add_u32 v12, v13, 4, v12
"""
bodyA = "".join(f"    buffer_load_dwordx4 v[{20+4*i}:{23+4*i}], v12, s[12:15], s16 offen offset:{32*i}\n" for i in range(28))
addrA2 = addrA.replace("v_lshl_add_u32 v12, v13, 4, v12", "v_lshl_add_u32 v12, v13, 6, v12")
bodyA2 = "".join(f"    buffer_load_dwordx4 v[{20+4*i}:{23+4*i}], v12, s[12:15], s16 offen offset:{128*(i//4)+16*(i%4)}\n" for i in range(28))
addrB = """    v_mul_u32_u24 v12, 32*896, v11
    v_lshl_add_u32 v12, v10, 4, v12
"""
def bodyB(lds):
    s = ""
    for i in range(28):
        if i % 4 == 0 and i: s += "    v_add_u32 v12, 4096, v12\n"
        if lds:
            if i % 4 == 0:
                s += f"    s_mul_i32 s18, s17, 28*1024\n    s_add_u32 s18, s18, {i*1024}\n    s_mov_b32 m0, s18\n    s_nop 0\n"
            s += f"    buffer_load_dwordx4 v12, s[12:15], s16 offen offset:{1024*(i%4)} lds\n"
        else:
            s += f"    buffer_load_dwordx4 v[{20+4*i}:{23+4*i}], v12, s[12:15], s16 offen offset:{1024*(i%4)}\n"
    return s
addrC = """    v_lshrrev_b32 v12, 3, v10
    v_lshl_add_u32 v12, v11, 5, v12
    v_mul_u32_u24 v12, 896, v12
    v_and_b32 v13, 7, v10
    v_lshl_add_u32 v12, v13, 4, v12
"""
def bodyC(lds):
    s = ""
    for g in range(4):
        if g: s += f"    v_add_u32 v12, {8*896}, v12\n"
        for c in range(7):
            i = g*7+c
            if lds:
                s += f"    s_mul_i32 s18, s17, 28*1024\n    s_add_u32 s18, s18, {i*1024 - 128*c + 4096}\n    s_mov_b32 m0, s18\n    s_nop 0\n"
                s += f"    buffer_load_dwordx4 v12, s[12:15], s16 offen offset:{128*c} lds\n"
            else:
                s += f"    buffer_load_dwordx4 v[{20+4*i}:{23+4*i}], v12, s[12:15], s16 offen offset:{128*c}\n"
    return s
addrD = """    v_lshrrev_b32 v12, 2, v10
    v_lshl_add_u32 v12, v11, 5, v12
    v_mul_u32_u24 v12, 896, v12
    v_and_b32 v13, 3, v10
    v_lshl_add_u32 v12, v13, 4, v12
"""
def bodyD():
    s = ""
    for g in range(2):
        if g: s += f"    v_add_u32 v12, {16*896}, v12\n"
        for c in range(14):
            i = g*14+c
            s += f"    buffer_load_dwordx4 v[{20+4*i}:{23+4*i}], v12, s[12:15], s16 offen offset:{64*c}\n"
    return s
for grid in (1, 256):
    for n, a, b in (("A", addrA, bodyA), ("A2", addrA2, bodyA2), ("B", addrB, bodyB(False)), ("Bl", addrB, bodyB(True)), ("C", addrC, bodyC(False)), ("Cl", addrC, bodyC(True)), ("D", addrD, bodyD())):
        open(f"ld_{n}_{grid}.s", "w").write(T.format(grid=grid, block=256, addr=a, body=b))
```

```python
from gen_ld import T
f8 = lambda i: f"    v_fma_f32 v{20+(i%64)}, v10, v10, v10\n"
f4 = lambda i: f"    v_mul_f32 v{20+(i%64)}, v10, v10\n"
pats = {"8": "8", "48": "48", "488": "488", "4488": "4488", "44448": "44448", "4": "4", "8888888884": "8888888884", "448": "448"}
for nm, p in pats.items():
    for off in (0, 4):
        body = ".p2align 6\n" + ("    s_nop 0\n" if off else "") + "".join((f8 if p[i % len(p)] == "8" else f4)(i) for i in range(960))
        open(f"al_{nm}_{off}.s", "w").write(T.format(grid=1, block=256, addr="", body=body))
```
